```python
import torch

def _softmax(x, axis=-1):
    return torch.softmax(x, dim=axis)
def _gelu(x):
    return torch.nn.functional.gelu(x, approximate="tanh")
def _silu(x):
    return torch.nn.functional.silu(x)
def _sigmoid(x):
    return torch.sigmoid(x)
def _layernorm(x, axis=-1, eps=1e-5):
    m = x.mean(dim=axis, keepdim=True)
    v = x.var(dim=axis, keepdim=True, unbiased=False)
    return (x - m) / torch.sqrt(v + eps)
def _scatter_add(tgt, idx, src, axis=0):
    return tgt.clone().index_add_(axis, idx, src)
def _segment_sum(src, seg, n):
    out = torch.zeros((n,) + src.shape[1:], dtype=src.dtype)
    return out.index_add_(0, seg, src)
def _pad(x, pw):
    flat = tuple(v for pair in reversed(pw) for v in pair)
    return torch.nn.functional.pad(x, flat)

kernel_name = 'concat_heads__linear_kernel_hedgehog__ssm_conv_s5__prompt'

def setup_inputs():

    _w = (lambda a: (lambda t: t.to(torch.bfloat16) if t.is_floating_point() else t)(torch.as_tensor(a)))
    def _A_setup():
        B, S, D, H = 1, 2048, 1024, 32
        Dh = D // H
        return {
            "x": _w((lambda *s: torch.randn(*s, dtype=torch.bfloat16) * 0.4)(B, S, D)),
            "wqkv": _w((lambda *s: torch.randn(*s, dtype=torch.bfloat16) * 0.4)(D, 3 * D)),
            "w_phi": _w((lambda *s: torch.randn(*s, dtype=torch.bfloat16) * 0.4)(H, Dh, Dh) * (Dh ** -0.5)),
            "wo": _w((lambda *s: torch.randn(*s, dtype=torch.bfloat16) * 0.05)(D, D)),
        }
    _A_in = _A_setup()

    def _B_setup():
        B, S, D = 1, 2048, 1024
        P = D
        Lambda_re = -0.5 * (lambda _x: torch.exp(torch.as_tensor(_x)))((lambda *s: torch.randn(*s, dtype=torch.bfloat16) * 0.8)(P))
        Lambda_im = (lambda *s: torch.randn(*s, dtype=torch.bfloat16) * 0.8)(P) * 1.0
        B_re = (lambda *s: torch.randn(*s, dtype=torch.bfloat16) * 0.8)(P, D) * (D ** -0.5)
        B_im = (lambda *s: torch.randn(*s, dtype=torch.bfloat16) * 0.8)(P, D) * (D ** -0.5)
        C_re = (lambda *s: torch.randn(*s, dtype=torch.bfloat16) * 0.8)(D, P) * (P ** -0.5)
        C_im = (lambda *s: torch.randn(*s, dtype=torch.bfloat16) * 0.8)(D, P) * (P ** -0.5)
        log_dt = (lambda *s: torch.randn(*s, dtype=torch.bfloat16) * 0.8)(P) * 0.3 - 2.0
        Dskip = (lambda *s: torch.randn(*s, dtype=torch.bfloat16) * 0.8)(D)
        return {
            "x": _w((lambda *s: torch.randn(*s, dtype=torch.bfloat16) * 0.05)(B, S, D)),
            "Lambda_re": _w(Lambda_re),
            "Lambda_im": _w(Lambda_im),
            "B_re": _w(B_re),
            "B_im": _w(B_im),
            "C_re": _w(C_re),
            "C_im": _w(C_im),
            "log_dt": _w(log_dt),
            "Dskip": _w(Dskip),
        }
    _B_in = _B_setup()

    return {
        "A_x": _A_in["x"],
        "A_wqkv": _A_in["wqkv"],
        "A_w_phi": _A_in["w_phi"],
        "A_wo": _A_in["wo"],
        "B_x": _B_in["x"],
        "B_Lambda_re": _B_in["Lambda_re"],
        "B_Lambda_im": _B_in["Lambda_im"],
        "B_B_re": _B_in["B_re"],
        "B_B_im": _B_in["B_im"],
        "B_C_re": _B_in["C_re"],
        "B_C_im": _B_in["C_im"],
        "B_log_dt": _B_in["log_dt"],
        "B_Dskip": _B_in["Dskip"],
    }

def reference(A_x, A_wqkv, A_w_phi, A_wo, B_x, B_Lambda_re, B_Lambda_im, B_B_re, B_B_im, B_C_re, B_C_im, B_log_dt, B_Dskip):
    def _A_ref(x, wqkv, w_phi, wo):
        B, S, D = x.shape
        H = 32; Dh = D // H
        qkv = (lambda x, *d: x.permute(*d))((x @ wqkv).reshape(B, S, 3, H, Dh), 2, 0, 3, 1, 4)
        q, k, v = qkv[0], qkv[1], qkv[2]
        pq = torch.einsum("bhsd,hdf->bhsf", q, w_phi)
        pk = torch.einsum("bhsd,hdf->bhsf", k, w_phi)
        phi_q = torch.concatenate([_softmax(pq, axis=-1), _softmax(-pq, axis=-1)], axis=-1)
        phi_k = torch.concatenate([_softmax(pk, axis=-1), _softmax(-pk, axis=-1)], axis=-1)
        kv = torch.einsum("bhsf,bhsd->bhfd", phi_k, v)
        z  = torch.einsum("bhsf->bhf", phi_k)
        num = torch.einsum("bhqf,bhfd->bhqd", phi_q, kv)
        den = torch.einsum("bhqf,bhf->bhq", phi_q, z)[..., None] + 1e-6
        o = num / den
        return (lambda x, *d: x.permute(*d))(o, 0, 2, 1, 3).reshape(B, S, D) @ wo

    def _B_ref(x, Lambda_re, Lambda_im, B_re, B_im, C_re, C_im, log_dt, Dskip):
        Bsz, L, H = x.shape
        Lam = Lambda_re + 1j * Lambda_im
        Bmat = B_re + 1j * B_im
        Cmat = C_re + 1j * C_im
        dt = torch.exp(log_dt)
        Lam_bar = torch.exp(dt * Lam)
        B_bar = ((Lam_bar - 1.0) / Lam)[:, None] * Bmat
        Bu = torch.einsum("bld,pd->blp", x + 0j, B_bar)
        h = torch.zeros_like(Bu[:, 0, :])
        hs = []
        for t in range(L):
            h = Lam_bar[None, :] * h + Bu[:, t, :]
            hs.append(h)
        hseq = torch.stack(hs, 1)
        y = 2.0 * torch.einsum("blp,dp->bld", hseq, Cmat).real + x * Dskip[None, None, :]
        return y

    a = _A_ref(A_x, A_wqkv, A_w_phi, A_wo)
    b = _B_ref(B_x, B_Lambda_re, B_Lambda_im, B_B_re, B_B_im, B_C_re, B_C_im, B_log_dt, B_Dskip)
    return torch.concatenate([a, b], axis=-1)
```

```python
class Asm:
    def __init__(self):
        self.lines = []
        self._uid = 0
    def __call__(self, s):
        for l in s.strip().split("\n"):
            self.lines.append("    " + l.strip())
    def label(self, l):
        self.lines.append(l + ":")
    def raw(self, s):
        self.lines.append(s)
    def uid(self, p="L"):
        self._uid += 1
        return f"{p}_{self._uid}"
    def text(self):
        return "\n".join(self.lines) + "\n"

def vr(b, n=1):
    return f"v{b}" if n == 1 else f"v[{b}:{b+n-1}]"
def sr(b, n=1):
    return f"s{b}" if n == 1 else f"s[{b}:{b+n-1}]"

def interleave(main, fill):
    out = []
    n = len(main)
    m = len(fill)
    k = 0
    for i, x in enumerate(main):
        out.append(x)
        tgt = (i + 1) * m // n if n else m
        while k < tgt:
            out.append(fill[k]); k += 1
    while k < m:
        out.append(fill[k]); k += 1
    return out

def front_fill(main, fill, per=1):
    out = []
    k = 0
    for x in main:
        out.append(x)
        for _ in range(per):
            if k < len(fill):
                out.append(fill[k]); k += 1
    while k < len(fill):
        out.append(fill[k]); k += 1
    return out
```

```python
import re

def vr(b, n=1):
    return f"v{b}" if n == 1 else f"v[{b}:{b+n-1}]"
def sr(b, n=1):
    return f"s{b}" if n == 1 else f"s[{b}:{b+n-1}]"

class Asm:
    def __init__(self):
        self.lines = []
        self._uid = 0
        self.nbar = 0
    def __call__(self, s):
        for l in s.strip().split("\n"):
            l = l.strip()
            if not l: continue
            if l.startswith("s_barrier"): self.nbar += 1
            self.lines.append("    " + l)
    def label(self, l):
        self.lines.append(l + ":")
    def raw(self, s):
        self.lines.append(s)
    def comment(self, s):
        self.lines.append("    ; " + s)
    def extend(self, other):
        self.lines.extend(other.lines)
        self.nbar += other.nbar
    def text(self):
        return "\n".join(self.lines) + "\n"

_uid = [0]
def uid(p="L"):
    _uid[0] += 1
    return f"{p}_{_uid[0]}"

class Regs:
    def __init__(s, vbase=1, sbase=16):
        s.v = vbase; s.s = sbase; s.vmax = vbase; s.smax = sbase
    def V(s, n=1, align=1):
        if n >= 2: align = max(align, 2)
        if n >= 4: align = max(align, 4)
        s.v = (s.v + align - 1) // align * align
        b = s.v; s.v += n
        s.vmax = max(s.vmax, s.v)
        assert s.v <= 256, f"out of VGPRs: {s.v}"
        return b
    def S(s, n=1, align=1):
        if n >= 2: align = max(align, 2)
        if n >= 4: align = max(align, 4)
        s.s = (s.s + align - 1) // align * align
        b = s.s; s.s += n
        s.smax = max(s.smax, s.s)
        assert s.s <= 76, f"out of SGPRs: {s.s}"
        return b
    def mark(s): return (s.v, s.s)
    def release(s, m): s.v, s.s = m

_REG = re.compile(r"^(-?)(?:abs\()?([vsa])(?:(\d+)|\[(\d+):(\d+)\])\)?$")
TRANS = ("v_exp_f32", "v_log_f32", "v_rcp_f32", "v_rsq_f32", "v_sqrt_f32", "v_sin_f32", "v_cos_f32", "v_rcp_iflag_f32")

def _regs(op):
    op = op.strip()
    if op.startswith("|") and op.endswith("|"): op = op[1:-1]
    if op.startswith("-|") and op.endswith("|"): op = op[2:-1]
    if op == "vcc": return {("s", 106), ("s", 107)}
    if op == "vcc_lo": return {("s", 106)}
    if op == "vcc_hi": return {("s", 107)}
    if op == "exec": return {("s", 126), ("s", 127)}
    if op == "m0": return {("s", 124)}
    m = _REG.match(op)
    if not m: return set()
    k = m.group(2)
    if m.group(3) is not None: return {(k, int(m.group(3)))}
    return {(k, i) for i in range(int(m.group(4)), int(m.group(5)) + 1)}

def _split_ops(rest):
    ops = []; depth = 0; cur = ""
    for ch in rest:
        if ch in "[(": depth += 1
        if ch in "])": depth -= 1
        if ch == "," and depth == 0:
            ops.append(cur.strip()); cur = ""
        else:
            cur += ch
    if cur.strip(): ops.append(cur.strip())
    if ops:
        parts = ops[-1].split()
        ops[-1] = parts[0]
        mods = parts[1:]
    else:
        mods = []
    return ops, mods

class Ins:
    __slots__ = ("mn", "kind", "w", "r", "rc", "passes", "states", "wide_store", "lds_dma", "dpp", "text", "ab")
    def __init__(s, text):
        s.text = text
        t = text.split(";")[0].strip()
        p = t.split(None, 1)
        s.mn = mn = p[0]
        rest = p[1] if len(p) > 1 else ""
        ops, mods = _split_ops(rest)
        s.w = set(); s.r = set(); s.rc = set(); s.ab = set(); s.passes = 0; s.states = 1
        s.wide_store = False; s.lds_dma = False
        s.dpp = any(m.startswith(("row_", "quad_perm", "wave_")) for m in mods)
        if mn == "s_nop":
            s.kind = "nop"; s.states = int(ops[0], 0) + 1
        elif mn.startswith("v_mfma"):
            s.kind = "mfma"
            s.w = _regs(ops[0]); s.ab = _regs(ops[1]) | _regs(ops[2]); s.rc = _regs(ops[3]); s.r = s.ab | s.rc
            s.passes = 8 if "32x32x16" in mn else 4
        elif mn.startswith("v_"):
            s.kind = "valu"
            if mn.startswith("v_cmp"):
                s.w = _regs(ops[0]); s.r = set().union(*[_regs(o) for o in ops[1:]])
                if mn.startswith("v_cmpx"): s.w |= _regs("exec")
            elif mn.startswith("v_permlane") and "swap" in mn:
                s.w = _regs(ops[0]) | _regs(ops[1]); s.r = set(s.w)
            elif mn.startswith(("v_add_co", "v_sub_co", "v_subrev_co", "v_addc_co", "v_subb_co", "v_div_scale")):
                s.w = _regs(ops[0]) | _regs(ops[1]); s.r = set().union(*[_regs(o) for o in ops[2:]])
            else:
                s.w = _regs(ops[0]); s.r = set().union(*[_regs(o) for o in ops[1:]]) if len(ops) > 1 else set()
                if mn.startswith(("v_fmac", "v_pk_fmac", "v_mac", "v_dot2c")): s.r |= s.w
                if mn.startswith("v_cndmask") and len(ops) == 3: s.r |= _regs("vcc")
                if mn.startswith("v_writelane"): s.r |= s.w
        elif mn.startswith("ds_"):
            s.kind = "ds"
            if mn.startswith(("ds_read", "ds_bpermute", "ds_permute", "ds_swizzle")):
                s.w = _regs(ops[0]); s.r = set().union(*[_regs(o) for o in ops[1:]])
            else:
                s.r = set().union(*[_regs(o) for o in ops])
        elif mn.startswith(("buffer_", "global_", "flat_")):
            s.kind = "vmem"
            if mn in ("buffer_wbl2", "buffer_inv"):
                pass
            elif "load" in mn:
                if "lds" in mods:
                    s.lds_dma = True
                    s.r = set().union(*[_regs(o) for o in ops]) | _regs("m0")
                else:
                    s.w = _regs(ops[0]); s.r = set().union(*[_regs(o) for o in ops[1:]])
            else:
                s.r = set().union(*[_regs(o) for o in ops])
                if "atomic" in mn and "sc0" in mods: s.w = _regs(ops[0]) if mn.startswith("buffer") else set()
                if mn.endswith(("x3", "x4")): s.wide_store = _regs(ops[0]) if mn.startswith("buffer") else _regs(ops[1])
        elif mn.startswith("s_"):
            s.kind = "salu"
            if mn.startswith(("s_cmp", "s_waitcnt", "s_barrier", "s_branch", "s_cbranch", "s_endpgm", "s_sleep", "s_setprio", "s_bitcmp")):
                s.r = set().union(*[_regs(o) for o in ops]) if ops else set()
            else:
                s.w = _regs(ops[0]) if ops else set()
                s.r = set().union(*[_regs(o) for o in ops[1:]]) if len(ops) > 1 else set()
                if "saveexec" in mn: s.w |= _regs("exec")
        else:
            raise ValueError("unknown instruction: " + text)

def need(p, c):
    n = 0
    vw = {x for x in p.w if x[0] in "va"}
    sw = {x for x in p.w if x[0] == "s"}
    if p.kind == "valu":
        if c.kind == "mfma" and vw & c.r: n = max(n, 2)
        if c.kind == "valu":
            if p.mn.startswith(TRANS) and not c.mn.startswith(TRANS) and vw & (c.r | c.w): n = max(n, 1)
            if c.mn.startswith("v_permlane") and vw & c.r: n = max(n, 2)
            if c.dpp and vw & c.r: n = max(n, 2)
            if c.mn.startswith(("v_readlane", "v_readfirstlane")) and vw & c.r: n = max(n, 1)
            if sw & c.r: n = max(n, 4 if c.mn.startswith(("v_readlane", "v_writelane")) else 2)
            if ("s", 126) in sw: n = max(n, 5)
        if c.kind == "vmem" and sw & c.r: n = max(n, 5)
        if c.kind == "mfma" and ("s", 126) in sw: n = max(n, 4)
        if c.kind == "salu" and sw & c.r: n = max(n, 1)
    if p.kind == "mfma":
        big = {4: 8, 8: 12}[p.passes]
        if c.kind == "mfma":
            if vw & c.ab: n = max(n, big)
            if vw & c.rc:
                if not (c.rc == p.w and c.passes == p.passes): n = max(n, {4: 6, 8: 10}[p.passes])
            elif vw & c.w: n = max(n, big)
        elif c.kind in ("valu", "vmem", "ds"):
            if vw & (c.r | c.w): n = max(n, big)
            if c.kind == "valu" and p.rc & c.w: n = max(n, {4: 3, 8: 7}[p.passes])
    if p.kind == "vmem" and p.wide_store:
        if p.wide_store & c.w: n = max(n, 2)
    if p.kind == "salu" and ("s", 124) in p.w and c.lds_dma: n = max(n, 1)
    return n

def fix_hazards(lines, window=24):
    out = []
    hist = []
    pos = 0
    inserted = 0
    def process(ins):
        nonlocal pos, inserted
        req = 0
        for (p, pp) in hist:
            k = need(p, ins)
            if k:
                have = pos - pp - 1 + 0
                req = max(req, k - have)
        return req
    saved = {}
    for l in lines:
        t = l.strip()
        if t.endswith(":") and not t.startswith(";"):
            for (p, age) in saved.pop(t[:-1], []):
                hist.append((p, pos - age))
            out.append(l); continue
        if not t or t.startswith((";", ".")):
            out.append(l); continue
        ins = Ins(t)
        req = process(ins)
        while req > 0:
            k = min(req, 16)
            out.append(f"    s_nop {k-1}")
            pos += k; req -= k; inserted += 1
        out.append(l)
        hist.append((ins, pos))
        pos += ins.states
        if ins.mn.startswith(("s_cbranch", "s_branch")):
            saved.setdefault(t.split()[1], []).extend([(p, pos - pp) for (p, pp) in hist])
        hist = [(p, pp) for (p, pp) in hist if pos - pp <= window]
    labels = {}
    for i, l in enumerate(out):
        t = l.strip()
        if t.endswith(":") and not t.startswith(";"): labels[t[:-1]] = i
    for i, l in enumerate(out):
        t = l.strip()
        if t.startswith(("s_cbranch", "s_branch")):
            tgt = t.split()[1]
            if tgt in labels and labels[tgt] < i:
                tail = []
                j = i; st = 0
                while j > labels[tgt] and st < window:
                    tt = out[j].strip()
                    if tt and not tt.startswith((";", ".")) and not tt.endswith(":"):
                        ii = Ins(tt); tail.append(ii); st += ii.states
                    j -= 1
                tail.reverse()
                tpos = []; pz = 0
                for ii in tail:
                    tpos.append((ii, pz)); pz += ii.states
                j = labels[tgt] + 1; st = 0
                while j <= i and st < window:
                    tt = out[j].strip()
                    if tt and not tt.startswith((";", ".")) and not tt.endswith(":"):
                        c = Ins(tt)
                        for (p, pp) in tpos:
                            k = need(p, c)
                            if k and (pz + st - pp - 1) < k:
                                raise ValueError(f"back-edge hazard: {p.text} -> {c.text}")
                        st += c.states
                    j += 1
    return out
```

```python
from asmlib import *

class G:
    def __init__(s, TM, TN, WM, WN, NST, S, blay, ring=0):
        s.TM, s.TN, s.WM, s.WN, s.NST, s.S, s.blay, s.ring = TM, TN, WM, WN, NST, S, blay, ring
        s.M16 = TM // WM // 16
        s.N16 = TN // WN // 16
        s.STAGE = (TM + TN) * 128
        s.nA = TM // 32
        s.nB = TN // 32
        s.nD = s.nA + s.nB
        s.NH = 2 if s.M16 == 8 else 1
        s.H = s.M16 // s.NH

def read_setup(a, g, R, sWm, sWn, vLane, vt, st):
    v0_, v1_, v2_ = vt[:3]
    s0_ = st[0]
    rd = {}
    for (name, lay, T, sw, regoff) in (('A', 'MK', g.M16, sWm, 0), ('B', g.blay, g.N16, sWn, g.TM * 128)):
        if lay in ('MK', 'NK'):
            base = [R.V() for _ in range(2)]
            cur = [R.V() for _ in range(2)]
            a(f"v_and_b32 {vr(v0_)}, 15, {vr(vLane)}")
            a(f"v_lshlrev_b32 {vr(v0_)}, 7, {vr(v0_)}")
            a(f"v_lshrrev_b32 {vr(v1_)}, 4, {vr(vLane)}")
            a(f"v_bfe_u32 {vr(v2_)}, {vr(vLane)}, 1, 3")
            a(f"v_xor_b32 {vr(v1_)}, {vr(v1_)}, {vr(v2_)}")
            a(f"v_lshl_add_u32 {vr(v0_)}, {vr(v1_)}, 4, {vr(v0_)}")
            if sw is None:
                a(f"v_add_u32 {vr(v0_)}, {regoff + g.ring}, {vr(v0_)}")
            else:
                a(f"s_mul_i32 {sr(s0_)}, {sr(sw)}, {T*16*128}")
                a(f"s_add_u32 {sr(s0_)}, {sr(s0_)}, {regoff + g.ring}")
                a(f"v_add_u32 {vr(v0_)}, {sr(s0_)}, {vr(v0_)}")
            for k2 in range(2):
                a(f"v_xor_b32 {vr(base[k2])}, {k2*64}, {vr(v0_)}")
        else:
            assert T == 4
            base = [R.V() for _ in range(4)]
            cur = [R.V() for _ in range(4)]
            a(f"v_lshrrev_b32 {vr(v0_)}, 4, {vr(vLane)}")
            a(f"v_lshlrev_b32 {vr(v0_)}, 3, {vr(v0_)}")
            a(f"v_bfe_u32 {vr(v1_)}, {vr(vLane)}, 2, 2")
            a(f"v_add_u32 {vr(v0_)}, {vr(v0_)}, {vr(v1_)}")
            a(f"v_lshlrev_b32 {vr(v0_)}, 7, {vr(v0_)}")
            a(f"v_bfe_u32 {vr(v1_)}, {vr(vLane)}, 3, 2")
            a(f"v_lshl_add_u32 {vr(v0_)}, {vr(v1_)}, 5, {vr(v0_)}")
            a(f"v_and_b32 {vr(v1_)}, 3, {vr(vLane)}")
            a(f"v_lshl_add_u32 {vr(v0_)}, {vr(v1_)}, 3, {vr(v0_)}")
            if sw is None:
                a(f"v_add_u32 {vr(v0_)}, {regoff + g.ring}, {vr(v0_)}")
            else:
                a(f"s_lshl_b32 {sr(s0_)}, {sr(sw)}, 13")
                a(f"s_add_u32 {sr(s0_)}, {sr(s0_)}, {regoff + g.ring}")
                a(f"v_add_u32 {vr(v0_)}, {sr(s0_)}, {vr(v0_)}")
            for n in range(4):
                a(f"v_xor_b32 {vr(base[n])}, {n*32}, {vr(v0_)}")
        rd[name] = (base, cur)
    return rd

def addr_update(rd, sOff):
    out = []
    for name in ('A', 'B'):
        base, cur = rd[name]
        for b, cu in zip(base, cur):
            out.append(f"v_add_u32 {vr(cu)}, {sr(sOff)}, {vr(b)}")
    return out

def compute_loop(a, g, R, rd, acc, swapf, sRdOff, sCnt, pre_barrier=None):
    fA = [[R.V(4) for _ in range(g.H)] for _ in range(2)]
    fB = [[R.V(4) for _ in range(g.N16)] for _ in range(2)]
    for m in range(g.M16):
        for n in range(g.N16):
            for i in range(4):
                a(f"v_mov_b32 {vr(acc[m][n]+i)}, 0")
    a(f"s_mov_b32 {sr(sRdOff)}, 0")
    for x in addr_update(rd, sRdOff): a(x)
    if pre_barrier: pre_barrier()
    a("s_barrier")
    def rdA(k2, h, stt):
        return [f"ds_read_b128 {vr(fA[stt][i],4)}, {vr(rd['A'][1][k2])} offset:{(h*g.H+i)*2048}" for i in range(g.H)]
    def rdB(k2, stt):
        if g.blay == 'NK':
            return [f"ds_read_b128 {vr(fB[stt][i],4)}, {vr(rd['B'][1][k2])} offset:{i*2048}" for i in range(g.N16)]
        out = []
        for n in range(g.N16):
            out.append(f"ds_read_b64_tr_b16 {vr(fB[stt][n],2)}, {vr(rd['B'][1][n])} offset:{(32*k2)*128}")
            out.append(f"ds_read_b64_tr_b16 {vr(fB[stt][n]+2,2)}, {vr(rd['B'][1][n])} offset:{(32*k2+4)*128}")
        return out
    def mf(h, sa, sb):
        out = []
        for i in range(g.H):
            for n in range(g.N16):
                m = h * g.H + i
                d = vr(acc[m][n], 4)
                if swapf(m, n):
                    out.append(f"v_mfma_f32_16x16x32_bf16 {d}, {vr(fB[sb][n],4)}, {vr(fA[sa][i],4)}, {d}")
                else:
                    out.append(f"v_mfma_f32_16x16x32_bf16 {d}, {vr(fA[sa][i],4)}, {vr(fB[sb][n],4)}, {d}")
        return out
    for x in rdA(0, 0, 0) + rdB(0, 0): a(x)
    a(f"s_mov_b32 {sr(sCnt)}, 0")
    L = uid("Lmm")
    a.label(L)
    nb0 = a.nbar
    NP = 2 * g.NH
    for p in range(NP):
        k2, h = p // g.NH, p % g.NH
        a("s_waitcnt lgkmcnt(0)")
        m = mf(h, p & 1, k2)
        if p < NP - 1:
            nk2, nh = (p + 1) // g.NH, (p + 1) % g.NH
            fill = rdA(nk2, nh, (p + 1) & 1)
            if nh == 0: fill = fill + rdB(nk2, nk2)
            if p == NP - 2:
                fill = fill + [f"s_add_u32 {sr(sRdOff)}, {sr(sRdOff)}, {g.STAGE}\ns_cmp_ge_u32 {sr(sRdOff)}, {g.STAGE*g.NST}\ns_cselect_b32 {sr(sRdOff)}, 0, {sr(sRdOff)}"]
            k = 0
            for i, x in enumerate(m):
                a(x)
                if k < len(fill):
                    a(fill[k]); k += 1
            assert k == len(fill)
        else:
            au = addr_update(rd, sRdOff)
            nb = len(m) // 2
            k = 0
            for x in m[:nb]:
                a(x)
                if k < len(au):
                    a(au[k]); k += 1
            assert k == len(au)
            a("s_barrier")
            fill = rdA(0, 0, 0) + rdB(0, 0)
            k = 0
            rest = m[nb:]
            per = (len(fill) + len(rest) - 1) // len(rest)
            for x in rest:
                for _ in range(per):
                    if k < len(fill):
                        a(fill[k]); k += 1
                a(x)
    a(f"s_add_u32 {sr(sCnt)}, {sr(sCnt)}, 1")
    a(f"s_cmp_lt_u32 {sr(sCnt)}, {g.S}")
    a(f"s_cbranch_scc1 {L}")
    a.nbar += g.S - 1
    a("s_waitcnt lgkmcnt(0)")

def lanepat_rows(a, vP, vt, vLane, sLW, ld, st):
    v1_ = vt[0]
    s0_, s1_ = st[:2]
    a(f"v_lshrrev_b32 {vr(vP)}, 3, {vr(vLane)}")
    a(f"s_mov_b32 {sr(s0_)}, {ld}")
    a(f"v_mul_lo_u32 {vr(vP)}, {vr(vP)}, {sr(s0_)}")
    a(f"v_lshrrev_b32 {vr(v1_)}, 4, {vr(vLane)}")
    a(f"v_xor_b32 {vr(v1_)}, {vr(v1_)}, {vr(vLane)}")
    a(f"v_and_b32 {vr(v1_)}, 7, {vr(v1_)}")
    a(f"s_and_b32 {sr(s0_)}, {sr(sLW)}, 1")
    a(f"s_lshl_b32 {sr(s0_)}, {sr(s0_)}, 2")
    a(f"v_xor_b32 {vr(v1_)}, {sr(s0_)}, {vr(v1_)}")
    a(f"v_lshl_add_u32 {vr(vP)}, {vr(v1_)}, 4, {vr(vP)}")
    a(f"s_mul_i32 {sr(s0_)}, {sr(sLW)}, {8*ld}")
    a(f"v_add_u32 {vr(vP)}, {sr(s0_)}, {vr(vP)}")

def lanepat_kn(a, vP, vt, vLane, sLW, ld, st, split=None):
    v1_, v2_ = vt[:2]
    s0_ = st[0]
    a(f"v_lshrrev_b32 {vr(vP)}, 3, {vr(vLane)}")
    a(f"s_lshl_b32 {sr(s0_)}, {sr(sLW)}, 3")
    a(f"v_add_u32 {vr(vP)}, {sr(s0_)}, {vr(vP)}")
    a(f"s_mov_b32 {sr(s0_)}, {ld}")
    a(f"v_mul_lo_u32 {vr(vP)}, {vr(vP)}, {sr(s0_)}")
    a(f"v_lshrrev_b32 {vr(v1_)}, 3, {vr(vLane)}")
    a(f"v_and_b32 {vr(v1_)}, 2, {vr(v1_)}")
    a(f"v_xor_b32 {vr(v1_)}, {vr(v1_)}, {vr(vLane)}")
    a(f"v_and_b32 {vr(v1_)}, 7, {vr(v1_)}")
    a(f"s_and_b32 {sr(s0_)}, {sr(sLW)}, 1")
    a(f"s_lshl_b32 {sr(s0_)}, {sr(s0_)}, 2")
    a(f"v_xor_b32 {vr(v1_)}, {sr(s0_)}, {vr(v1_)}")
    if split is None:
        a(f"v_lshl_add_u32 {vr(vP)}, {vr(v1_)}, 4, {vr(vP)}")
    else:
        a(f"v_and_b32 {vr(v2_)}, 3, {vr(v1_)}")
        a(f"v_lshl_add_u32 {vr(vP)}, {vr(v2_)}, 4, {vr(vP)}")
        a(f"v_lshrrev_b32 {vr(v2_)}, 2, {vr(v1_)}")
        a(f"s_mov_b32 {sr(s0_)}, {split}")
        a(f"v_mul_lo_u32 {vr(v2_)}, {vr(v2_)}, {sr(s0_)}")
        a(f"v_add_u32 {vr(vP)}, {vr(vP)}, {vr(v2_)}")

def loader_loop(a, g, pieces, advance, sLdW, sLdEnd, sTmp, sCnt, after_prologue=None, tail_work=None, dma_mod=""):
    n = len(pieces)
    def issue():
        for (v, srd, so, lo) in pieces:
            a(f"s_add_u32 m0, {sr(sLdW)}, {lo}")
            a(f"buffer_load_dwordx4 {vr(v)}, {sr(srd,4)}, {sr(so)} offen lds{dma_mod}")
        advance()
        a(f"s_add_u32 {sr(sLdW)}, {sr(sLdW)}, {g.STAGE}")
        a(f"s_cmp_ge_u32 {sr(sLdW)}, {sr(sLdEnd)}")
        a(f"s_cselect_b32 {sr(sTmp)}, {g.STAGE*g.NST}, 0")
        a(f"s_sub_u32 {sr(sLdW)}, {sr(sLdW)}, {sr(sTmp)}")
    pre = g.NST - 1
    for _ in range(pre): issue()
    if after_prologue: after_prologue()
    a(f"s_waitcnt vmcnt({(pre-1)*n})")
    a("s_barrier")
    nst = g.S - pre
    a(f"s_mov_b32 {sr(sCnt)}, 0")
    L = uid("Lld")
    a.label(L)
    issue()
    a(f"s_waitcnt vmcnt({(pre-1)*n})")
    a("s_barrier")
    a(f"s_add_u32 {sr(sCnt)}, {sr(sCnt)}, 1")
    a(f"s_cmp_lt_u32 {sr(sCnt)}, {nst}")
    a(f"s_cbranch_scc1 {L}")
    a.nbar += nst - 1
    for s in range(g.S - pre, g.S - 1):
        remaining = g.S - 1 - (s + 1)
        a(f"s_waitcnt vmcnt({remaining*n})")
        a("s_barrier")
    if tail_work: tail_work()
    a("s_barrier")
```

```python
import sys, math
from asmlib import *
from core import *

NAME = "concat_heads__linear_kernel_hedgehog__ssm_conv_s5__prompt"
P_AX, P_WQKV, P_WPHI, P_WO, P_BX, P_LRE, P_LIM, P_BRE, P_BIM, P_CRE, P_CIM, P_LDT, P_DSK, P_OUT, P_DBG, P_WS = range(16)
SZ = {P_AX: 4 << 20, P_WQKV: 6 << 20, P_WPHI: 65536, P_WO: 2 << 20, P_BX: 4 << 20, P_LRE: 2048, P_LIM: 2048,
      P_BRE: 2 << 20, P_BIM: 2 << 20, P_CRE: 2 << 20, P_CIM: 2 << 20, P_LDT: 2048, P_DSK: 2048, P_OUT: 16 << 20,
      P_DBG: 256, P_WS: 256 << 20}
WS_KVP = 0
WS_O = 4 << 20
WS_E = 8 << 20
WS_H = 16 << 20
C_S1A, C_S1B, C_S2A, C_S2B = 0, 16, 32, 40
LOG2E = 0x3fb8aa3b

SP = 4
def sptr(i): return SP + 2 * i
sW, sRB, sCB, sRot, sWm, sWn, sLW = 36, 37, 38, 39, 40, 41, 42
SBASE = 44
vLane = 1
VBASE = 2

def srd(a, R, p, off=0, size=None):
    s = R.S(4, 4)
    if off:
        a(f"s_add_u32 {sr(s)}, {sr(sptr(p))}, {off}")
        a(f"s_addc_u32 {sr(s+1)}, {sr(sptr(p)+1)}, 0")
    else:
        a(f"s_mov_b32 {sr(s)}, {sr(sptr(p))}")
        a(f"s_mov_b32 {sr(s+1)}, {sr(sptr(p)+1)}")
    a(f"s_mov_b32 {sr(s+2)}, {size if size is not None else SZ[p] - off}")
    a(f"s_mov_b32 {sr(s+3)}, 0x20000")
    return s

def temps(R, nv=4, ns=4):
    return [R.V() for _ in range(nv)], [R.S(1, 2)] + [R.S() for _ in range(ns - 1)]

def cvt_pk(a, d, x, y):
    a(f"v_cvt_pk_bf16_f32 {vr(d)}, {vr(x)}, {vr(y)}")

def signal(a, R, sIdx, base, sBit=None):
    m = R.mark()
    sd = srd(a, R, P_DBG)
    v0_, v1_ = R.V(), R.V()
    sx = R.S(2, 2)
    a(f"s_lshl_b32 {sr(sx)}, {sr(sIdx)}, 2")
    a(f"s_add_u32 {sr(sx)}, {sr(sx)}, {base*4}")
    a(f"v_mov_b32 {vr(v0_)}, {sr(sx)}")
    if sBit is None:
        a(f"v_mov_b32 {vr(v1_)}, 1")
    else:
        a(f"s_lshl_b32 {sr(sx)}, 1, {sr(sBit)}")
        a(f"v_mov_b32 {vr(v1_)}, {sr(sx)}")
    a(f"s_mov_b64 {sr(sx,2)}, exec")
    a("s_mov_b64 exec, 1")
    a(f"buffer_atomic_{'add' if sBit is None else 'or'} {vr(v1_)}, {vr(v0_)}, {sr(sd,4)}, 0 offen sc1")
    a(f"s_mov_b64 exec, {sr(sx,2)}")
    R.release(m)

def poll(a, R, sIdx, base, target, sMask=None):
    m = R.mark()
    sd = srd(a, R, P_DBG)
    v0_, v1_ = R.V(), R.V()
    sx = R.S(); sn = R.S()
    a(f"s_lshl_b32 {sr(sx)}, {sr(sIdx)}, 2")
    a(f"s_add_u32 {sr(sx)}, {sr(sx)}, {base*4}")
    a(f"v_mov_b32 {vr(v0_)}, {sr(sx)}")
    a(f"s_mov_b32 {sr(sn)}, 0")
    L = uid("Lpoll"); Ld = uid("Lpolld")
    a.label(L)
    a(f"buffer_load_dword {vr(v1_)}, {vr(v0_)}, {sr(sd,4)}, 0 offen sc1")
    a("s_waitcnt vmcnt(0)")
    a(f"v_readfirstlane_b32 {sr(sx)}, {vr(v1_)}")
    if sMask is None:
        a(f"s_cmp_ge_u32 {sr(sx)}, {target}")
    else:
        a(f"s_and_b32 {sr(sx)}, {sr(sx)}, {sr(sMask)}")
        a(f"s_cmp_eq_u32 {sr(sx)}, {sr(sMask)}")
    a(f"s_cbranch_scc1 {Ld}")
    a("s_sleep 2")
    a(f"s_add_u32 {sr(sn)}, {sr(sn)}, 1")
    a(f"s_cmp_lt_u32 {sr(sn)}, 0x40000")
    a(f"s_cbranch_scc1 {L}")
    a.label(Ld)
    R.release(m)

def wphi_frags(a, R, sHead, vt, st, tmp16):
    m = R.mark()
    out = None
    sd = srd(a, R, P_WPHI)
    R.release((R.v, m[1]))
    fr = [R.V(4), R.V(4)]
    v0_, v1_ = vt[:2]
    a(f"v_lshrrev_b32 {vr(v0_)}, 4, {vr(vLane)}")
    a(f"v_lshlrev_b32 {vr(v0_)}, 8, {vr(v0_)}")
    a(f"v_and_b32 {vr(v1_)}, 15, {vr(vLane)}")
    a(f"v_lshl_add_u32 {vr(v0_)}, {vr(v1_)}, 1, {vr(v0_)}")
    a(f"s_lshl_b32 {sr(st[0])}, {sr(sHead)}, 11")
    for ft in range(2):
        for j in range(8):
            d = 16 * (j >> 2) + (j & 3)
            a(f"buffer_load_ushort {vr(tmp16+ft*8+j)}, {vr(v0_)}, {sr(sd,4)}, {sr(st[0])} offen offset:{(d*32+16*ft)*2}")
    a("s_waitcnt vmcnt(0)")
    for ft in range(2):
        for jj in range(4):
            a(f"v_lshl_or_b32 {vr(fr[ft]+jj)}, {vr(tmp16+ft*8+2*jj+1)}, 16, {vr(tmp16+ft*8+2*jj)}")
    return fr

def xreduce(a, op, x, t):
    for sw in ("v_permlane16_swap_b32", "v_permlane32_swap_b32"):
        a(f"v_mov_b32 {vr(t)}, {vr(x)}")
        a(f"{sw} {vr(x)}, {vr(t)}")
        a(f"{op} {vr(x)}, {vr(x)}, {vr(t)}")

def feature_map(a, xT0, xT1, wfr, tmp, phP, phM, sL):
    kB = tmp; P = tmp + 4; E = tmp + 12; mx = tmp + 20; mn = tmp + 21; t0 = tmp + 22; sp = tmp + 23; sm = tmp + 24; t1 = tmp + 25
    cvt_pk(a, kB, xT0, xT0 + 1); cvt_pk(a, kB + 1, xT0 + 2, xT0 + 3)
    cvt_pk(a, kB + 2, xT1, xT1 + 1); cvt_pk(a, kB + 3, xT1 + 2, xT1 + 3)
    for ft in range(2):
        a(f"v_mfma_f32_16x16x32_bf16 {vr(P+4*ft,4)}, {vr(wfr[ft],4)}, {vr(kB,4)}, 0")
    for i in range(4):
        cvt_pk(a, E + i, P + 2 * i, P + 2 * i + 1)
    for i in range(4):
        a(f"v_lshlrev_b32 {vr(P+2*i)}, 16, {vr(E+i)}")
        a(f"v_and_b32 {vr(P+2*i+1)}, 0xffff0000, {vr(E+i)}")
    a(f"v_max3_f32 {vr(mx)}, {vr(P)}, {vr(P+1)}, {vr(P+2)}")
    a(f"v_min3_f32 {vr(mn)}, {vr(P)}, {vr(P+1)}, {vr(P+2)}")
    a(f"v_max3_f32 {vr(mx)}, {vr(mx)}, {vr(P+3)}, {vr(P+4)}")
    a(f"v_min3_f32 {vr(mn)}, {vr(mn)}, {vr(P+3)}, {vr(P+4)}")
    a(f"v_max3_f32 {vr(mx)}, {vr(mx)}, {vr(P+5)}, {vr(P+6)}")
    a(f"v_min3_f32 {vr(mn)}, {vr(mn)}, {vr(P+5)}, {vr(P+6)}")
    a(f"v_max_f32 {vr(mx)}, {vr(mx)}, {vr(P+7)}")
    a(f"v_min_f32 {vr(mn)}, {vr(mn)}, {vr(P+7)}")
    xreduce(a, "v_max_f32", mx, t0)
    xreduce(a, "v_min_f32", mn, t1)
    for (sgn, ph, ref, s_) in ((0, phP, mx, sp), (1, phM, mn, sm)):
        for i in range(8):
            if sgn == 0: a(f"v_sub_f32 {vr(E+i)}, {vr(P+i)}, {vr(ref)}")
            else: a(f"v_sub_f32 {vr(E+i)}, {vr(ref)}, {vr(P+i)}")
        for i in range(8):
            a(f"v_mul_f32 {vr(E+i)}, {sr(sL)}, {vr(E+i)}")
        for i in range(8):
            a(f"v_exp_f32 {vr(E+i)}, {vr(E+i)}")
        a(f"v_add_f32 {vr(s_)}, {vr(E)}, {vr(E+1)}")
        a(f"v_add_f32 {vr(t0)}, {vr(E+2)}, {vr(E+3)}")
        a(f"v_add_f32 {vr(t1)}, {vr(E+4)}, {vr(E+5)}")
        a(f"v_add_f32 {vr(s_)}, {vr(s_)}, {vr(t0)}")
        a(f"v_add_f32 {vr(t0)}, {vr(E+6)}, {vr(E+7)}")
        a(f"v_add_f32 {vr(s_)}, {vr(s_)}, {vr(t1)}")
        a(f"v_add_f32 {vr(s_)}, {vr(s_)}, {vr(t0)}")
        xreduce(a, "v_add_f32", s_, t0)
        a(f"v_rcp_f32 {vr(s_)}, {vr(s_)}")
        for i in range(8):
            a(f"v_mul_f32 {vr(E+i)}, {vr(E+i)}, {vr(s_)}")
        for i in range(4):
            cvt_pk(a, ph + i, E + 2 * i, E + 2 * i + 1)

GA1 = G(256, 128, 2, 2, 3, 16, 'KN')
GA2 = G(256, 64, 4, 1, 3, 16, 'KN')
GA3 = G(128, 128, 2, 2, 4, 16, 'KN')
GB1 = G(256, 128, 2, 2, 3, 16, 'NK')
GB3 = G(128, 128, 2, 2, 4, 32, 'NK')
SCR = 120 * 1024

def A1_compute(a, R, mega):
    g = GA1
    m0 = R.mark()
    vt, st = temps(R)
    sRd, sCnt, sL, sHead = R.S(), R.S(), R.S(), R.S()
    a(f"s_lshr_b32 {sr(sWm)}, {sr(sW)}, 1")
    a(f"s_and_b32 {sr(sWn)}, {sr(sW)}, 1")
    a(f"s_lshl_b32 {sr(sHead)}, {sr(sCB)}, 1")
    a(f"s_add_u32 {sr(sHead)}, {sr(sHead)}, {sr(sWn)}")
    a(f"s_mov_b32 {sr(sL)}, {LOG2E}")
    acc = [[R.V(4) for _ in range(4)] for _ in range(8)]
    wfr = wphi_frags(a, R, sHead, vt, st, acc[0][0])
    m1 = R.mark()
    rd = read_setup(a, g, R, sWm, sWn, vLane, vt, st)
    compute_loop(a, g, R, rd, acc, lambda m, n: n < 2, sRd, sCnt)
    R.release(m1)
    tmp = R.V(28, 4)
    ph = [R.V(4), R.V(4)]
    ident = [R.V(4), R.V(4)]
    ones = R.V(4)
    T = [[R.V(4) for _ in range(4)] for _ in range(2)]
    Af = R.V(4); Bv = [R.V(4), R.V(4)]
    kv = [[None] * 3 for _ in range(4)]
    a(f"v_and_b32 {vr(vt[0])}, 15, {vr(vLane)}")
    a(f"v_lshrrev_b32 {vr(vt[1])}, 4, {vr(vLane)}")
    a(f"v_lshlrev_b32 {vr(vt[1])}, 2, {vr(vt[1])}")
    a(f"v_sub_u32 {vr(vt[0])}, {vr(vt[0])}, {vr(vt[1])}")
    a(f"v_mov_b32 {vr(vt[2])}, 0x3f80")
    a(f"v_mov_b32 {vr(vt[3])}, 0x3f800000")
    for ft in range(2):
        for jj in range(4):
            if (jj >> 1) != ft:
                a(f"v_mov_b32 {vr(ident[ft]+jj)}, 0")
            else:
                lo = 2 * (jj & 1)
                a(f"v_cmp_eq_u32 vcc, {lo}, {vr(vt[0])}")
                a(f"v_cndmask_b32 {vr(ident[ft]+jj)}, 0, {vr(vt[2])}, vcc")
                a(f"v_cmp_eq_u32 vcc, {lo+1}, {vr(vt[0])}")
                a(f"v_cndmask_b32 {vr(ident[ft]+jj)}, {vr(ident[ft]+jj)}, {vr(vt[3])}, vcc")
    for i in range(4):
        a(f"v_mov_b32 {vr(ones+i)}, 0x3f803f80")
    first = True
    for sp_ in range(4):
        for h in range(2):
            stt = 2 * sp_ + h
            feature_map(a, acc[stt][0], acc[stt][1], wfr, tmp, ph[0], ph[1], sL)
            for sgn in range(2):
                for ft in range(2):
                    a(f"v_mfma_f32_16x16x32_bf16 {vr(T[h][2*sgn+ft],4)}, {vr(ph[sgn],4)}, {vr(ident[ft],4)}, 0")
        if first:
            pool = [acc[0][0], acc[0][1], acc[1][0], acc[1][1], acc[0][2], acc[0][3], acc[1][2], acc[1][3]] + [R.V(4) for _ in range(4)]
            for f4 in range(4):
                for c in range(3):
                    kv[f4][c] = pool[f4 * 3 + c]
        for dt in range(2):
            cvt_pk(a, Bv[dt], acc[2*sp_][2+dt], acc[2*sp_][2+dt] + 1)
            cvt_pk(a, Bv[dt] + 1, acc[2*sp_][2+dt] + 2, acc[2*sp_][2+dt] + 3)
            cvt_pk(a, Bv[dt] + 2, acc[2*sp_+1][2+dt], acc[2*sp_+1][2+dt] + 1)
            cvt_pk(a, Bv[dt] + 3, acc[2*sp_+1][2+dt] + 2, acc[2*sp_+1][2+dt] + 3)
        for f4 in range(4):
            cvt_pk(a, Af, T[0][f4], T[0][f4] + 1); cvt_pk(a, Af + 1, T[0][f4] + 2, T[0][f4] + 3)
            cvt_pk(a, Af + 2, T[1][f4], T[1][f4] + 1); cvt_pk(a, Af + 3, T[1][f4] + 2, T[1][f4] + 3)
            for c in range(3):
                B_ = Bv[c] if c < 2 else ones
                C_ = "0" if first else vr(kv[f4][c], 4)
                a(f"v_mfma_f32_16x16x32_bf16 {vr(kv[f4][c],4)}, {vr(Af,4)}, {vr(B_,4)}, {C_}")
        first = False
    tiles = [kv[t >> 1][t & 1] for t in range(8)] + [kv[f4][2] for f4 in range(4)]
    vA = vt[0]
    a(f"s_mul_i32 {sr(st[0])}, {sr(sW)}, {6*1024}")
    a(f"s_add_u32 {sr(st[0])}, {sr(st[0])}, {SCR}")
    a(f"v_lshlrev_b32 {vr(vA)}, 4, {vr(vLane)}")
    a(f"v_add_u32 {vr(vt[1])}, {sr(st[0])}, {vr(vA)}")
    a(f"s_xor_b32 {sr(st[1])}, {sr(sW)}, 2")
    a(f"s_mul_i32 {sr(st[1])}, {sr(st[1])}, {6*1024}")
    a(f"s_add_u32 {sr(st[1])}, {sr(st[1])}, {SCR}")
    a(f"v_add_u32 {vr(vt[2])}, {sr(st[1])}, {vr(vA)}")
    Lw1 = uid("Lx1"); Lw2 = uid("Lx2")
    a(f"s_cmp_eq_u32 {sr(sWm)}, 0")
    a(f"s_cbranch_scc0 {Lw1}")
    for i in range(6): a(f"ds_write_b128 {vr(vt[1])}, {vr(tiles[6+i],4)} offset:{i*1024}")
    a(f"s_branch {Lw2}")
    a.label(Lw1)
    for i in range(6): a(f"ds_write_b128 {vr(vt[1])}, {vr(tiles[i],4)} offset:{i*1024}")
    for i in range(6):
        for k in range(4): a(f"v_mov_b32 {vr(tiles[i]+k)}, {vr(tiles[6+i]+k)}")
    a.label(Lw2)
    a("s_waitcnt lgkmcnt(0)")
    a("s_barrier")
    for i in range(6): a(f"ds_read_b128 {vr(tiles[6+i],4)}, {vr(vt[2])} offset:{i*1024}")
    sk = srd(a, R, P_WS, WS_KVP, 3 << 20)
    a(f"s_lshl_b32 {sr(st[0])}, {sr(sRB)}, 5")
    a(f"s_add_u32 {sr(st[0])}, {sr(st[0])}, {sr(sHead)}")
    a(f"s_mul_i32 {sr(st[0])}, {sr(st[0])}, 12")
    a(f"s_mul_i32 {sr(st[1])}, {sr(sWm)}, 6")
    a(f"s_add_u32 {sr(st[0])}, {sr(st[0])}, {sr(st[1])}")
    a(f"s_lshl_b32 {sr(st[0])}, {sr(st[0])}, 10")
    a(f"v_add_u32 {vr(vt[1])}, {sr(st[0])}, {vr(vA)}")
    for i in range(6):
        a(f"s_waitcnt lgkmcnt({5-i})")
        for k in range(4): a(f"v_add_f32 {vr(tiles[i]+k)}, {vr(tiles[i]+k)}, {vr(tiles[6+i]+k)}")
        a(f"s_mov_b32 {sr(st[2])}, {i*1024}")
        a(f"buffer_store_dwordx4 {vr(tiles[i],4)}, {vr(vt[1])}, {sr(sk,4)}, {sr(st[2])} offen sc1")
    a("s_waitcnt vmcnt(0)")
    a("s_barrier")
    if mega:
        Ls = uid("Lsig")
        a(f"s_cmp_eq_u32 {sr(sW)}, 0")
        a(f"s_cbranch_scc0 {Ls}")
        signal(a, R, sCB, C_S1A)
        a.label(Ls)
    R.release(m0)

def x_pieces(a, R, g, p_x, ld, sRow0, vt, st, sK, off=0, size=None):
    sx = srd(a, R, p_x, off, size)
    vP = vt[3]
    lanepat_rows(a, vP, vt, vLane, sLW, ld, st)
    pcs = []
    for t in range(g.nA):
        v = R.V()
        a(f"s_add_u32 {sr(st[0])}, {sr(sRow0)}, {32*t}")
        a(f"s_mul_i32 {sr(st[0])}, {sr(st[0])}, {ld}")
        a(f"v_add_u32 {vr(v)}, {sr(st[0])}, {vr(vP)}")
        pcs.append((v, sx, sK, t * 4096))
    return pcs

def loader_common(a, R, g):
    sKA, sKB, sLdW, sLdEnd, sTmp, sCnt = [R.S() for _ in range(6)]
    a(f"s_lshl_b32 {sr(sLdW)}, {sr(sLW)}, 10")
    if g.ring: a(f"s_add_u32 {sr(sLdW)}, {sr(sLdW)}, {g.ring}")
    a(f"s_add_u32 {sr(sLdEnd)}, {sr(sLdW)}, {g.STAGE*g.NST}")
    return sKA, sKB, sLdW, sLdEnd, sTmp, sCnt

def adv_simple(a, g, sKA, sKB, kA, kB):
    def f():
        a(f"s_add_u32 {sr(sKA)}, {sr(sKA)}, {kA}")
        a(f"s_add_u32 {sr(sKB)}, {sr(sKB)}, {kB}")
        a(f"s_cmp_ge_u32 {sr(sKA)}, {kA*g.S}")
        a(f"s_cselect_b32 {sr(sKA)}, 0, {sr(sKA)}")
        a(f"s_cselect_b32 {sr(sKB)}, 0, {sr(sKB)}")
    return f

def A1_loader(a, R, mega):
    g = GA1
    m0 = R.mark()
    vt, st = temps(R)
    sKA, sKB, sLdW, sLdEnd, sTmp, sCnt = loader_common(a, R, g)
    sRow = R.S()
    a(f"s_lshl_b32 {sr(sRow)}, {sr(sRB)}, 8")
    a(f"s_lshl_b32 {sr(sKA)}, {sr(sRot)}, 7")
    a(f"s_mul_i32 {sr(sKB)}, {sr(sRot)}, {64*6144}")
    pcs = x_pieces(a, R, g, P_AX, 2048, sRow, vt, st, sKA)
    sw = srd(a, R, P_WQKV)
    vP = vt[3]
    lanepat_kn(a, vP, vt, vLane, sLW, 6144, st, split=2048)
    for t in range(g.nB):
        v = R.V()
        u = t >> 1
        a(f"s_lshl_b32 {sr(st[0])}, {sr(sCB)}, 7")
        a(f"s_add_u32 {sr(st[0])}, {sr(st[0])}, {(1024 + u*32)*2 + 32*(t&1)*6144}")
        a(f"v_add_u32 {vr(v)}, {sr(st[0])}, {vr(vP)}")
        pcs.append((v, sw, sKB, g.TM * 128 + t * 4096))
    loader_loop(a, g, pcs, adv_simple(a, g, sKA, sKB, 128, 64 * 6144), sLdW, sLdEnd, sTmp, sCnt)
    R.release(m0)

KVL = SCR
def A2_compute(a, R, mega):
    g = GA2
    m0 = R.mark()
    vt, st = temps(R)
    sRd, sCnt, sL, sHead = R.S(), R.S(), R.S(), R.S()
    a(f"s_mov_b32 {sr(sL)}, {LOG2E}")
    acc = [[R.V(4) for _ in range(4)] for _ in range(4)]
    a(f"s_lshl_b32 {sr(sHead)}, {sr(sCB)}, 1")
    wfr0 = wphi_frags(a, R, sHead, vt, st, acc[0][0])
    a(f"s_add_u32 {sr(sHead)}, {sr(sHead)}, 1")
    wfr1 = wphi_frags(a, R, sHead, vt, st, acc[0][0])
    wfr = [wfr0, wfr1]
    m1 = R.mark()
    rd = read_setup(a, g, R, sW, None, vLane, vt, st)
    compute_loop(a, g, R, rd, acc, lambda m, n: True, sRd, sCnt)
    R.release(m1)
    tmp = R.V(28, 4)
    ph = [[[R.V(4), R.V(4)] for _ in range(2)] for _ in range(4)]
    for stt in range(4):
        for hh in range(2):
            feature_map(a, acc[stt][2*hh], acc[stt][2*hh+1], wfr[hh], tmp, ph[stt][hh][0], ph[stt][hh][1], sL)
    a("s_barrier")
    kvf = [[R.V(4) for _ in range(6)] for _ in range(2)]
    a(f"v_lshlrev_b32 {vr(vt[0])}, 4, {vr(vLane)}")
    a(f"v_add_u32 {vr(vt[0])}, {KVL}, {vr(vt[0])}")
    for hh in range(2):
        for f in range(6):
            a(f"ds_read_b128 {vr(kvf[hh][f],4)}, {vr(vt[0])} offset:{(hh*6+f)*1024}")
    a(f"v_and_b32 {vr(vt[1])}, 15, {vr(vLane)}")
    a(f"v_lshlrev_b32 {vr(vt[1])}, 7, {vr(vt[1])}")
    a(f"v_lshrrev_b32 {vr(vt[2])}, 5, {vr(vLane)}")
    a(f"v_xor_b32 {vr(vt[2])}, {vr(vt[2])}, {vr(vLane)}")
    a(f"v_and_b32 {vr(vt[2])}, 7, {vr(vt[2])}")
    a(f"v_lshl_add_u32 {vr(vt[1])}, {vr(vt[2])}, 4, {vr(vt[1])}")
    a(f"v_bfe_u32 {vr(vt[2])}, {vr(vLane)}, 4, 1")
    a(f"v_lshl_add_u32 {vr(vt[1])}, {vr(vt[2])}, 3, {vr(vt[1])}")
    a(f"s_lshl_b32 {sr(st[0])}, {sr(sW)}, 13")
    a(f"v_add_u32 {vr(vt[1])}, {sr(st[0])}, {vr(vt[1])}")
    vst = [R.V() for _ in range(4)]
    for c in range(4):
        a(f"v_xor_b32 {vr(vst[c])}, {c*32}, {vr(vt[1])}")
    a(f"s_mov_b32 {sr(st[1])}, 0x358637bd")
    a("s_waitcnt lgkmcnt(0)")
    N = tmp; D = tmp + 8; Q = tmp + 12
    for stt in range(4):
        for hh in range(2):
            p = ph[stt][hh]
            for dt in range(2):
                a(f"v_mfma_f32_16x16x32_bf16 {vr(N+4*dt,4)}, {vr(kvf[hh][dt],4)}, {vr(p[0],4)}, 0")
                a(f"v_mfma_f32_16x16x32_bf16 {vr(N+4*dt,4)}, {vr(kvf[hh][2+dt],4)}, {vr(p[1],4)}, {vr(N+4*dt,4)}")
            a(f"v_mfma_f32_16x16x32_bf16 {vr(D,4)}, {vr(kvf[hh][4],4)}, {vr(p[0],4)}, 0")
            a(f"v_mfma_f32_16x16x32_bf16 {vr(D,4)}, {vr(kvf[hh][5],4)}, {vr(p[1],4)}, {vr(D,4)}")
            cvt_pk(a, Q, D, D)
            a(f"v_and_b32 {vr(Q)}, 0xffff0000, {vr(Q)}")
            a(f"v_add_f32 {vr(Q)}, {sr(st[1])}, {vr(Q)}")
            cvt_pk(a, Q, Q, Q)
            a(f"v_and_b32 {vr(Q)}, 0xffff0000, {vr(Q)}")
            a(f"v_rcp_f32 {vr(Q)}, {vr(Q)}")
            for i in range(4):
                cvt_pk(a, Q + 4 + i, N + 2 * i, N + 2 * i + 1)
            for i in range(4):
                a(f"v_lshlrev_b32 {vr(N+2*i)}, 16, {vr(Q+4+i)}")
                a(f"v_and_b32 {vr(N+2*i+1)}, 0xffff0000, {vr(Q+4+i)}")
            for i in range(8):
                a(f"v_mul_f32 {vr(N+i)}, {vr(N+i)}, {vr(Q)}")
            for i in range(4):
                cvt_pk(a, Q + 4 + i, N + 2 * i, N + 2 * i + 1)
            for dt in range(2):
                a(f"ds_write_b64 {vr(vst[hh*2+dt])}, {vr(Q+4+2*dt,2)} offset:{stt*2048}")
    so = srd(a, R, P_WS, WS_O, 4 << 20)
    a(f"v_lshrrev_b32 {vr(vt[0])}, 3, {vr(vLane)}")
    a(f"v_xor_b32 {vr(vt[2])}, {vr(vt[0])}, {vr(vLane)}")
    a(f"v_and_b32 {vr(vt[2])}, 7, {vr(vt[2])}")
    a(f"v_lshlrev_b32 {vr(vt[1])}, 7, {vr(vt[0])}")
    a(f"v_lshl_add_u32 {vr(vt[1])}, {vr(vt[2])}, 4, {vr(vt[1])}")
    a(f"v_add_u32 {vr(vt[1])}, {sr(st[0])}, {vr(vt[1])}")
    a(f"v_lshlrev_b32 {vr(vt[2])}, 11, {vr(vt[0])}")
    a(f"v_and_b32 {vr(vt[3])}, 7, {vr(vLane)}")
    a(f"v_lshl_add_u32 {vr(vt[2])}, {vr(vt[3])}, 4, {vr(vt[2])}")
    a(f"s_lshl_b32 {sr(st[2])}, {sr(sRB)}, 2")
    a(f"s_add_u32 {sr(st[2])}, {sr(st[2])}, {sr(sW)}")
    a(f"s_lshl_b32 {sr(st[2])}, {sr(st[2])}, 17")
    a(f"s_lshl_b32 {sr(st[3])}, {sr(sCB)}, 7")
    a(f"s_add_u32 {sr(st[2])}, {sr(st[2])}, {sr(st[3])}")
    a(f"v_add_u32 {vr(vt[2])}, {sr(st[2])}, {vr(vt[2])}")
    a("s_waitcnt lgkmcnt(0)")
    buf = [acc[i >> 2][i & 3] for i in range(8)]
    for i in range(8):
        a(f"ds_read_b128 {vr(buf[i],4)}, {vr(vt[1])} offset:{i*1024}")
    for i in range(8):
        a(f"s_waitcnt lgkmcnt({7-i})")
        a(f"s_mov_b32 {sr(st[3])}, {i*8*2048}")
        a(f"buffer_store_dwordx4 {vr(buf[i],4)}, {vr(vt[2])}, {sr(so,4)}, {sr(st[3])} offen sc1")
    a("s_waitcnt vmcnt(0)")
    a("s_barrier")
    if mega:
        Ls = uid("Lsig")
        a(f"s_cmp_eq_u32 {sr(sW)}, 0")
        a(f"s_cbranch_scc0 {Ls}")
        signal(a, R, sRB, C_S2A)
        a.label(Ls)
    R.release(m0)

def A2_loader(a, R, mega, nbar_before):
    g = GA2
    m0 = R.mark()
    vt, st = temps(R)
    sKA, sKB, sLdW, sLdEnd, sTmp, sCnt = loader_common(a, R, g)
    sRow = R.S()
    a(f"s_lshl_b32 {sr(sRow)}, {sr(sRB)}, 8")
    a(f"s_lshl_b32 {sr(sKA)}, {sr(sRot)}, 7")
    a(f"s_mul_i32 {sr(sKB)}, {sr(sRot)}, {64*6144}")
    pcs = x_pieces(a, R, g, P_AX, 2048, sRow, vt, st, sKA)
    sw = srd(a, R, P_WQKV)
    vP = vt[3]
    lanepat_kn(a, vP, vt, vLane, sLW, 6144, st)
    for t in range(g.nB):
        v = R.V()
        a(f"s_lshl_b32 {sr(st[0])}, {sr(sCB)}, 7")
        a(f"s_add_u32 {sr(st[0])}, {sr(st[0])}, {32*(t&1)*6144}")
        a(f"v_add_u32 {vr(v)}, {sr(st[0])}, {vr(vP)}")
        pcs.append((v, sw, sKB, g.TM * 128 + t * 4096))
    def extra():
        for _ in range(nbar_before): a("s_barrier")
    loader_loop(a, g, pcs, adv_simple(a, g, sKA, sKB, 128, 64 * 6144), sLdW, sLdEnd, sTmp, sCnt, after_prologue=extra)
    if mega: poll(a, R, sCB, C_S1A, 8)
    sk = srd(a, R, P_WS, WS_KVP, 3 << 20)
    buf = [[R.V(4) for _ in range(8)] for _ in range(6)]
    a(f"s_mul_i32 {sr(st[0])}, {sr(sCB)}, 24")
    a(f"s_mul_i32 {sr(st[1])}, {sr(sLW)}, 6")
    a(f"s_add_u32 {sr(st[0])}, {sr(st[0])}, {sr(st[1])}")
    a(f"s_lshl_b32 {sr(st[0])}, {sr(st[0])}, 10")
    a(f"v_lshlrev_b32 {vr(vt[0])}, 4, {vr(vLane)}")
    a(f"v_add_u32 {vr(vt[1])}, {sr(st[0])}, {vr(vt[0])}")
    for i in range(6):
        for r in range(8):
            a(f"s_mov_b32 {sr(st[2])}, {r*32*12*1024 + i*1024}")
            a(f"buffer_load_dwordx4 {vr(buf[i][r],4)}, {vr(vt[1])}, {sr(sk,4)}, {sr(st[2])} offen sc1")
    def dest(t):
        if t < 8: return ((t >> 2) * 2 + (t & 1)) * 1024 + ((t >> 1) & 1) * 8
        f4 = t - 8
        return (4 + (f4 >> 1)) * 1024 + (f4 & 1) * 8
    a(f"s_lshr_b32 {sr(st[0])}, {sr(sLW)}, 1")
    a(f"s_mul_i32 {sr(st[0])}, {sr(st[0])}, {6*1024}")
    a(f"s_add_u32 {sr(st[0])}, {sr(st[0])}, {KVL}")
    a(f"v_add_u32 {vr(vt[0])}, {sr(st[0])}, {vr(vt[0])}")
    for i in range(6):
        a(f"s_waitcnt vmcnt({(5-i)*8})")
        b = buf[i]
        for k in range(4):
            a(f"v_add_f32 {vr(b[0]+k)}, {vr(b[0]+k)}, {vr(b[1]+k)}")
            a(f"v_add_f32 {vr(b[2]+k)}, {vr(b[2]+k)}, {vr(b[3]+k)}")
            a(f"v_add_f32 {vr(b[4]+k)}, {vr(b[4]+k)}, {vr(b[5]+k)}")
            a(f"v_add_f32 {vr(b[6]+k)}, {vr(b[6]+k)}, {vr(b[7]+k)}")
        for k in range(4):
            a(f"v_add_f32 {vr(b[0]+k)}, {vr(b[0]+k)}, {vr(b[2]+k)}")
            a(f"v_add_f32 {vr(b[4]+k)}, {vr(b[4]+k)}, {vr(b[6]+k)}")
        for k in range(4):
            a(f"v_add_f32 {vr(b[0]+k)}, {vr(b[0]+k)}, {vr(b[4]+k)}")
        cvt_pk(a, b[1], b[0], b[0] + 1); cvt_pk(a, b[1] + 1, b[0] + 2, b[0] + 3)
    Lo = uid("Lg1"); Le = uid("Lg2")
    a(f"s_bitcmp1_b32 {sr(sLW)}, 0")
    a(f"s_cbranch_scc1 {Lo}")
    for i in range(6): a(f"ds_write_b64 {vr(vt[0])}, {vr(buf[i][1],2)} offset:{dest(i)}")
    a(f"s_branch {Le}")
    a.label(Lo)
    for i in range(6): a(f"ds_write_b64 {vr(vt[0])}, {vr(buf[i][1],2)} offset:{dest(6+i)}")
    a.label(Le)
    a("s_waitcnt lgkmcnt(0)")
    a("s_barrier")
    a("s_barrier")
    R.release(m0)

def P3_compute(a, R, chainB):
    g = GB3 if chainB else GA3
    m0 = R.mark()
    vt, st = temps(R)
    sRd, sCnt = R.S(), R.S()
    a(f"s_lshr_b32 {sr(sWm)}, {sr(sW)}, 1")
    a(f"s_and_b32 {sr(sWn)}, {sr(sW)}, 1")
    acc = [[R.V(4) for _ in range(4)] for _ in range(4)]
    sRow, sCol = R.S(), R.S()
    a(f"s_lshl_b32 {sr(sRow)}, {sr(sRB)}, 8")
    a(f"s_and_b32 {sr(st[0])}, {sr(sCB)}, 1")
    a(f"s_lshl_b32 {sr(st[0])}, {sr(st[0])}, 7")
    a(f"s_add_u32 {sr(sRow)}, {sr(sRow)}, {sr(st[0])}")
    a(f"s_lshl_b32 {sr(st[0])}, {sr(sWm)}, 6")
    a(f"s_add_u32 {sr(sRow)}, {sr(sRow)}, {sr(st[0])}")
    a(f"s_lshr_b32 {sr(sCol)}, {sr(sCB)}, 1")
    a(f"s_lshl_b32 {sr(sCol)}, {sr(sCol)}, 7")
    a(f"s_lshl_b32 {sr(st[0])}, {sr(sWn)}, 6")
    a(f"s_add_u32 {sr(sCol)}, {sr(sCol)}, {sr(st[0])}")
    vRow, vCol = R.V(), R.V()
    a(f"v_and_b32 {vr(vRow)}, 15, {vr(vLane)}")
    a(f"v_add_u32 {vr(vRow)}, {sr(sRow)}, {vr(vRow)}")
    a(f"v_lshrrev_b32 {vr(vCol)}, 4, {vr(vLane)}")
    a(f"v_lshlrev_b32 {vr(vCol)}, 2, {vr(vCol)}")
    a(f"v_add_u32 {vr(vCol)}, {sr(sCol)}, {vr(vCol)}")
    if chainB:
        xs = [[R.V(2) for _ in range(4)] for _ in range(4)]
        dk = [R.V(2) for _ in range(4)]
        mm = R.mark()
        sx = srd(a, R, P_BX); sdk = srd(a, R, P_DSK)
        a(f"v_lshlrev_b32 {vr(vt[0])}, 11, {vr(vRow)}")
        a(f"v_lshl_add_u32 {vr(vt[0])}, {vr(vCol)}, 1, {vr(vt[0])}")
        a(f"v_lshlrev_b32 {vr(vt[1])}, 1, {vr(vCol)}")
        for m in range(4):
            a(f"s_mov_b32 {sr(st[0])}, {m*16*2048}")
            for n in range(4):
                a(f"buffer_load_dwordx2 {vr(xs[m][n],2)}, {vr(vt[0])}, {sr(sx,4)}, {sr(st[0])} offen offset:{n*32}")
        for n in range(4):
            a(f"buffer_load_dwordx2 {vr(dk[n],2)}, {vr(vt[1])}, {sr(sdk,4)}, 0 offen offset:{n*32}")
        R.release(mm)
    m1 = R.mark()
    rd = read_setup(a, g, R, sWm, sWn, vLane, vt, st)
    compute_loop(a, g, R, rd, acc, lambda m, n: True, sRd, sCnt)
    R.release(m1)
    so = srd(a, R, P_OUT)
    a(f"v_lshlrev_b32 {vr(vt[0])}, 13, {vr(vRow)}")
    a(f"v_lshl_add_u32 {vr(vt[0])}, {vr(vCol)}, 2, {vr(vt[0])}")
    if chainB:
        a(f"v_add_u32 {vr(vt[0])}, 4096, {vr(vt[0])}")
        a("s_waitcnt vmcnt(0)")
        t8 = R.V(8, 4)
        dkf = [R.V(4) for _ in range(4)]
        for n in range(4):
            for i in range(2):
                a(f"v_lshlrev_b32 {vr(dkf[n]+2*i)}, 16, {vr(dk[n]+i)}")
                a(f"v_and_b32 {vr(dkf[n]+2*i+1)}, 0xffff0000, {vr(dk[n]+i)}")
    for m in range(4):
        a(f"s_mov_b32 {sr(st[0])}, {m*16*8192}")
        for n in range(4):
            A_ = acc[m][n]
            if chainB:
                for i in range(2):
                    a(f"v_lshlrev_b32 {vr(t8+2*i)}, 16, {vr(xs[m][n]+i)}")
                    a(f"v_and_b32 {vr(t8+2*i+1)}, 0xffff0000, {vr(xs[m][n]+i)}")
                for i in range(4):
                    a(f"v_mul_f32 {vr(t8+i)}, {vr(t8+i)}, {vr(dkf[n]+i)}")
                cvt_pk(a, t8 + 4, t8, t8 + 1); cvt_pk(a, t8 + 5, t8 + 2, t8 + 3)
                for i in range(2):
                    a(f"v_lshlrev_b32 {vr(t8+2*i)}, 16, {vr(t8+4+i)}")
                    a(f"v_and_b32 {vr(t8+2*i+1)}, 0xffff0000, {vr(t8+4+i)}")
                for i in range(4):
                    a(f"v_add_f32 {vr(A_+i)}, {vr(A_+i)}, {vr(t8+i)}")
            else:
                cvt_pk(a, vt[1], A_, A_ + 1); cvt_pk(a, vt[2], A_ + 2, A_ + 3)
                a(f"v_lshlrev_b32 {vr(A_)}, 16, {vr(vt[1])}")
                a(f"v_and_b32 {vr(A_+1)}, 0xffff0000, {vr(vt[1])}")
                a(f"v_lshlrev_b32 {vr(A_+2)}, 16, {vr(vt[2])}")
                a(f"v_and_b32 {vr(A_+3)}, 0xffff0000, {vr(vt[2])}")
            a(f"buffer_store_dwordx4 {vr(A_,4)}, {vr(vt[0])}, {sr(so,4)}, {sr(st[0])} offen offset:{n*64}")
    R.release(m0)

def P3_loader(a, R, chainB, mega):
    g = GB3 if chainB else GA3
    m0 = R.mark()
    vt, st = temps(R)
    sKA, sKB, sLdW, sLdEnd, sTmp, sCnt = loader_common(a, R, g)
    sRow = R.S()
    a(f"s_lshl_b32 {sr(sRow)}, {sr(sRB)}, 8")
    a(f"s_and_b32 {sr(st[0])}, {sr(sCB)}, 1")
    a(f"s_lshl_b32 {sr(st[0])}, {sr(st[0])}, 7")
    a(f"s_add_u32 {sr(sRow)}, {sr(sRow)}, {sr(st[0])}")
    vP = vt[3]
    if not chainB:
        a(f"s_lshl_b32 {sr(sKA)}, {sr(sRot)}, 7")
        a(f"s_lshl_b32 {sr(sKB)}, {sr(sRot)}, 17")
        pcs = x_pieces(a, R, g, P_WS, 2048, sRow, vt, st, sKA, off=WS_O, size=4 << 20)
        sw = srd(a, R, P_WO)
        lanepat_kn(a, vP, vt, vLane, sLW, 2048, st)
        for t in range(g.nB):
            v = R.V()
            a(f"s_lshr_b32 {sr(st[0])}, {sr(sCB)}, 1")
            a(f"s_lshl_b32 {sr(st[0])}, {sr(st[0])}, 8")
            a(f"s_add_u32 {sr(st[0])}, {sr(st[0])}, {(t>>1)*128 + 32*(t&1)*2048}")
            a(f"v_add_u32 {vr(v)}, {sr(st[0])}, {vr(vP)}")
            pcs.append((v, sw, sKB, g.TM * 128 + t * 4096))
        adv = adv_simple(a, g, sKA, sKB, 128, 64 * 2048)
    else:
        a(f"s_lshl_b32 {sr(sKA)}, {sr(sRot)}, 8")
        pcs = x_pieces(a, R, g, P_WS, 4096, sRow, vt, st, sKA, off=WS_H, size=8 << 20)
        sw = srd(a, R, P_CRE)
        lanepat_rows(a, vP, vt, vLane, sLW, 2048, st)
        for t in range(g.nB):
            v = R.V()
            a(f"s_lshr_b32 {sr(st[0])}, {sr(sCB)}, 1")
            a(f"s_lshl_b32 {sr(st[0])}, {sr(st[0])}, 7")
            a(f"s_add_u32 {sr(st[0])}, {sr(st[0])}, {32*t}")
            a(f"s_lshl_b32 {sr(st[0])}, {sr(st[0])}, 11")
            a(f"v_add_u32 {vr(v)}, {sr(st[0])}, {vr(vP)}")
            pcs.append((v, sw, sKB, g.TM * 128 + t * 4096))
        def setB():
            a(f"s_and_b32 {sr(sKB)}, {sr(sKA)}, 2047")
            a(f"s_cmp_lt_u32 {sr(sKA)}, 2048")
            a(f"s_cselect_b32 {sr(sw)}, {sr(sptr(P_CRE))}, {sr(sptr(P_CIM))}")
            a(f"s_cselect_b32 {sr(sw+1)}, {sr(sptr(P_CRE)+1)}, {sr(sptr(P_CIM)+1)}")
        setB()
        def adv():
            a(f"s_add_u32 {sr(sKA)}, {sr(sKA)}, 128")
            a(f"s_and_b32 {sr(sKA)}, {sr(sKA)}, 4095")
            setB()
    if mega:
        poll(a, R, sRB, C_S2B if chainB else C_S2A, 16)
    loader_loop(a, g, pcs, adv, sLdW, sLdEnd, sTmp, sCnt, dma_mod=(" sc1" if mega else ""))
    R.release(m0)

WREG = 34816
EXO = 4 * WREG

def pk(op, d, x, y, z=None, neg=None):
    ops = f"{vr(d,2)}, {vr(x,2)}, {vr(y,2)}" + (f", {vr(z,2)}" if z is not None else "")
    m = ""
    if neg is not None:
        bits = ["0"] * (3 if z is not None else 2); bits[neg] = "1"
        m = f" neg_lo:[{','.join(bits)}] neg_hi:[{','.join(bits)}]"
    return f"v_pk_{op}_f32 {ops}{m}"

def cmul(a, dr, di, ar, ai, br, bi, t):
    for h in (0, 2):
        a(pk("mul", t + h, ai + h, bi + h))
        a(pk("mul", t + 4 + h, ai + h, br + h))
    for h in (0, 2):
        a(pk("fma", t + h, ar + h, br + h, t + h, neg=2))
        a(pk("fma", t + 4 + h, ar + h, bi + h, t + 4 + h))
    for i in range(4):
        a(f"v_mov_b32 {vr(dr+i)}, {vr(t+i)}")
        a(f"v_mov_b32 {vr(di+i)}, {vr(t+4+i)}")

def cmac_step(a, nr, ni, lr, li, ur, ui, wr, wi):
    for h in (0, 2):
        a(pk("fma", nr + h, lr + h, ur + h, wr + h))
        a(pk("fma", ni + h, lr + h, ui + h, wi + h))
    for h in (0, 2):
        a(pk("fma", nr + h, li + h, ui + h, nr + h, neg=0))
        a(pk("fma", ni + h, li + h, ur + h, ni + h))

def B1_compute(a, R, mega):
    g = GB1
    m0 = R.mark()
    vt, st = temps(R)
    sRd, sCnt = R.S(), R.S()
    a(f"s_lshr_b32 {sr(sWm)}, {sr(sW)}, 1")
    a(f"s_and_b32 {sr(sWn)}, {sr(sW)}, 1")
    acc = [[R.V(4) for _ in range(4)] for _ in range(8)]
    Q = lambda: R.V(4)
    lr, li, kr, ki, l16r, l16i, l256r, l256i, pwr, pwi = [Q() for _ in range(10)]
    T = acc[0][0]
    raw = T; lre = T + 8; lim = T + 12; dt = T + 16; x0 = T + 20; x1 = T + 24; x2 = T + 28; x3 = T + 32; t8 = T + 40; qr = T + 48; qi = T + 52
    mm = R.mark()
    s1 = srd(a, R, P_LRE); s2 = srd(a, R, P_LIM); s3 = srd(a, R, P_LDT)
    a(f"v_and_b32 {vr(vt[0])}, 7, {vr(vLane)}")
    a(f"v_lshlrev_b32 {vr(vt[0])}, 3, {vr(vt[0])}")
    a(f"s_lshl_b32 {sr(st[0])}, {sr(sCB)}, 7")
    a(f"s_lshl_b32 {sr(st[1])}, {sr(sWn)}, 6")
    a(f"s_add_u32 {sr(st[0])}, {sr(st[0])}, {sr(st[1])}")
    a(f"buffer_load_dwordx2 {vr(raw,2)}, {vr(vt[0])}, {sr(s1,4)}, {sr(st[0])} offen")
    a(f"buffer_load_dwordx2 {vr(raw+2,2)}, {vr(vt[0])}, {sr(s2,4)}, {sr(st[0])} offen")
    a(f"buffer_load_dwordx2 {vr(raw+4,2)}, {vr(vt[0])}, {sr(s3,4)}, {sr(st[0])} offen")
    R.release(mm)
    a(f"s_mov_b32 {sr(st[2])}, {LOG2E}")
    a(f"s_mov_b32 {sr(st[3])}, 0x3e22f983")
    a("s_waitcnt vmcnt(0)")
    for (dst, src) in ((lre, raw), (lim, raw + 2), (dt, raw + 4)):
        for i in range(2):
            a(f"v_lshlrev_b32 {vr(dst+2*i)}, 16, {vr(src+i)}")
            a(f"v_and_b32 {vr(dst+2*i+1)}, 0xffff0000, {vr(src+i)}")
    for i in range(4): a(f"v_mul_f32 {vr(dt+i)}, {sr(st[2])}, {vr(dt+i)}")
    for i in range(4): a(f"v_exp_f32 {vr(dt+i)}, {vr(dt+i)}")
    cvt_pk(a, raw, dt, dt + 1); cvt_pk(a, raw + 1, dt + 2, dt + 3)
    for i in range(2):
        a(f"v_lshlrev_b32 {vr(dt+2*i)}, 16, {vr(raw+i)}")
        a(f"v_and_b32 {vr(dt+2*i+1)}, 0xffff0000, {vr(raw+i)}")
    for i in range(4):
        a(f"v_mul_f32 {vr(x0+i)}, {vr(dt+i)}, {vr(lre+i)}")
        a(f"v_mul_f32 {vr(x1+i)}, {vr(dt+i)}, {vr(lim+i)}")
    for i in range(4):
        a(f"v_mul_f32 {vr(x0+i)}, {sr(st[2])}, {vr(x0+i)}")
        a(f"v_mul_f32 {vr(x1+i)}, {sr(st[3])}, {vr(x1+i)}")
    for i in range(4):
        a(f"v_exp_f32 {vr(x0+i)}, {vr(x0+i)}")
        a(f"v_fract_f32 {vr(x1+i)}, {vr(x1+i)}")
    for i in range(4):
        a(f"v_cos_f32 {vr(x2+i)}, {vr(x1+i)}")
        a(f"v_sin_f32 {vr(x3+i)}, {vr(x1+i)}")
    for i in range(4):
        a(f"v_mul_f32 {vr(lr+i)}, {vr(x0+i)}, {vr(x2+i)}")
        a(f"v_mul_f32 {vr(x3+i)}, {vr(x0+i)}, {vr(x3+i)}")
    for i in range(4):
        a(f"v_add_f32 {vr(x2+i)}, -1.0, {vr(lr+i)}")
        a(f"v_mul_f32 {vr(x0+i)}, {vr(lre+i)}, {vr(lre+i)}")
        a(f"v_xor_b32 {vr(li+i)}, 0x80000000, {vr(x3+i)}")
    for i in range(4):
        a(f"v_fma_f32 {vr(x0+i)}, {vr(lim+i)}, {vr(lim+i)}, {vr(x0+i)}")
        a(f"v_mul_f32 {vr(kr+i)}, {vr(x2+i)}, {vr(lre+i)}")
        a(f"v_mul_f32 {vr(ki+i)}, {vr(x3+i)}, {vr(lre+i)}")
    for i in range(4):
        a(f"v_rcp_f32 {vr(x0+i)}, {vr(x0+i)}")
        a(f"v_fma_f32 {vr(kr+i)}, {vr(x3+i)}, {vr(lim+i)}, {vr(kr+i)}")
        a(f"v_fma_f32 {vr(ki+i)}, -{vr(x2+i)}, {vr(lim+i)}, {vr(ki+i)}")
    for i in range(4):
        a(f"v_add_f32 {vr(x0+i)}, {vr(x0+i)}, {vr(x0+i)}")
    for i in range(4):
        a(f"v_mul_f32 {vr(kr+i)}, {vr(kr+i)}, {vr(x0+i)}")
        a(f"v_mul_f32 {vr(ki+i)}, {vr(ki+i)}, -{vr(x0+i)}")
    for i in range(4):
        a(f"v_mov_b32 {vr(qr+i)}, {vr(lr+i)}")
        a(f"v_mov_b32 {vr(qi+i)}, {vr(li+i)}")
        a(f"v_mov_b32 {vr(pwr+i)}, 1.0")
        a(f"v_mov_b32 {vr(pwi+i)}, 0")
    for k in range(4): cmul(a, qr, qi, qr, qi, qr, qi, t8)
    for i in range(4):
        a(f"v_mov_b32 {vr(l16r+i)}, {vr(qr+i)}")
        a(f"v_mov_b32 {vr(l16i+i)}, {vr(qi+i)}")
    a(f"v_lshrrev_b32 {vr(vt[1])}, 3, {vr(vLane)}")
    a(f"s_lshl_b32 {sr(st[0])}, {sr(sWm)}, 3")
    a(f"v_add_u32 {vr(vt[1])}, {sr(st[0])}, {vr(vt[1])}")
    vq16 = R.V()
    a(f"v_mov_b32 {vr(vq16)}, {vr(vt[1])}")
    for k in range(4):
        cmul(a, x0, x1, pwr, pwi, qr, qi, t8)
        a(f"v_and_b32 {vr(vt[2])}, {1<<k}, {vr(vq16)}")
        a(f"v_cmp_ne_u32 vcc, 0, {vr(vt[2])}")
        for i in range(4):
            a(f"v_cndmask_b32 {vr(pwr+i)}, {vr(pwr+i)}, {vr(x0+i)}, vcc")
            a(f"v_cndmask_b32 {vr(pwi+i)}, {vr(pwi+i)}, {vr(x1+i)}, vcc")
        cmul(a, qr, qi, qr, qi, qr, qi, t8)
    for i in range(4):
        a(f"v_mov_b32 {vr(l256r+i)}, {vr(qr+i)}")
        a(f"v_mov_b32 {vr(l256i+i)}, {vr(qi+i)}")
    m1 = R.mark()
    rd = read_setup(a, g, R, sWm, sWn, vLane, vt, st)
    compute_loop(a, g, R, rd, acc, lambda m, n: True, sRd, sCnt)
    R.release(m1)
    sWB = R.S()
    a(f"s_mul_i32 {sr(sWB)}, {sr(sW)}, {WREG}")
    wa = [R.V(), R.V()]
    a(f"v_and_b32 {vr(vt[0])}, 15, {vr(vLane)}")
    a(f"v_lshlrev_b32 {vr(vt[0])}, 7, {vr(vt[0])}")
    a(f"v_lshrrev_b32 {vr(vt[1])}, 4, {vr(vLane)}")
    a(f"v_xor_b32 {vr(vt[1])}, {vr(vt[1])}, {vr(vLane)}")
    a(f"v_and_b32 {vr(vt[1])}, 7, {vr(vt[1])}")
    a(f"v_lshl_add_u32 {vr(vt[0])}, {vr(vt[1])}, 4, {vr(vt[0])}")
    a(f"v_add_u32 {vr(wa[0])}, {sr(sWB)}, {vr(vt[0])}")
    a(f"v_xor_b32 {vr(wa[1])}, 64, {vr(wa[0])}")
    for m in range(8):
        for n in range(4):
            a(f"ds_write_b128 {vr(wa[n&1])}, {vr(acc[m][n],4)} offset:{(n>>1)*17408 + m*2176}")
    ra = [R.V() for _ in range(8)]
    a(f"v_lshrrev_b32 {vr(vt[0])}, 3, {vr(vLane)}")
    a(f"v_mul_u32_u24 {vr(vt[0])}, 2176, {vr(vt[0])}")
    a(f"v_and_b32 {vr(vt[1])}, 7, {vr(vLane)}")
    a(f"v_lshl_add_u32 {vr(vt[0])}, {vr(vt[1])}, 4, {vr(vt[0])}")
    a(f"v_add_u32 {vr(vt[0])}, {sr(sWB)}, {vr(vt[0])}")
    for k in range(8): a(f"v_xor_b32 {vr(ra[k])}, {k*16}, {vr(vt[0])}")
    X = acc[0][0]
    Xr = lambda j: X + 8 * j
    Xi = lambda j: X + 8 * j + 4
    a("s_waitcnt lgkmcnt(0)")
    for j in range(16):
        a(f"ds_read_b128 {vr(Xr(j),4)}, {vr(ra[j&7])} offset:{j*128}")
        a(f"ds_read_b128 {vr(Xi(j),4)}, {vr(ra[j&7])} offset:{17408 + j*128}")
    tq = R.V(8, 4)
    u = [(Q(), Q()), (Q(), Q())]
    for j in range(16):
        if j < 8: a(f"s_waitcnt lgkmcnt({14 - 2*j})")
        elif j == 8: a("s_waitcnt lgkmcnt(0)")
        for h in (0, 2):
            a(pk("mul", tq + h, ki + h, Xr(j) + h))
            a(pk("mul", Xr(j) + h, kr + h, Xr(j) + h))
        for h in (0, 2):
            a(pk("fma", Xr(j) + h, ki + h, Xi(j) + h, Xr(j) + h))
            a(pk("fma", Xi(j) + h, kr + h, Xi(j) + h, tq + h, neg=0))
        if j == 0:
            cur = (Xr(0), Xi(0))
        else:
            nx = u[j & 1]
            cmac_step(a, nx[0], nx[1], lr, li, cur[0], cur[1], Xr(j), Xi(j))
            cur = nx
    a(f"s_lshl_b32 {sr(st[0])}, {sr(sWn)}, 12")
    a(f"s_add_u32 {sr(st[0])}, {sr(st[0])}, {EXO}")
    a(f"v_and_b32 {vr(vt[1])}, 7, {vr(vLane)}")
    a(f"v_lshlrev_b32 {vr(vt[1])}, 5, {vr(vt[1])}")
    a(f"v_add_u32 {vr(vt[1])}, {sr(st[0])}, {vr(vt[1])}")
    a(f"v_lshl_add_u32 {vr(vt[0])}, {vr(vq16)}, 8, {vr(vt[1])}")
    a(f"ds_write_b128 {vr(vt[0])}, {vr(cur[0],4)}")
    a(f"ds_write_b128 {vr(vt[0])}, {vr(cur[1],4)} offset:16")
    a("s_waitcnt lgkmcnt(0)")
    a("s_barrier")
    cl = (Q(), Q())
    eb = [(Q(), Q()), (Q(), Q()), (kr, ki)]
    for i in range(4):
        a(f"v_mov_b32 {vr(cl[0]+i)}, 0")
        a(f"v_mov_b32 {vr(cl[1]+i)}, 0")
    def rde(q):
        b = eb[q % 3]
        a(f"ds_read_b128 {vr(b[0],4)}, {vr(vt[1])} offset:{q*256}")
        a(f"ds_read_b128 {vr(b[1],4)}, {vr(vt[1])} offset:{q*256+16}")
    rde(0); rde(1)
    cur = None
    for q in range(16):
        if q + 2 < 16: rde(q + 2)
        a(f"s_waitcnt lgkmcnt({min(4, 2*(15-q))})")
        b = eb[q % 3]
        if q == 0:
            nx = u[0]
            for i in range(4):
                a(f"v_mov_b32 {vr(nx[0]+i)}, {vr(b[0]+i)}")
                a(f"v_mov_b32 {vr(nx[1]+i)}, {vr(b[1]+i)}")
        else:
            nx = u[q & 1]
            cmac_step(a, nx[0], nx[1], l16r, l16i, cur[0], cur[1], b[0], b[1])
        cur = nx
        if q < 15:
            a(f"v_cmp_eq_u32 vcc, {q+1}, {vr(vq16)}")
            for i in range(4):
                a(f"v_cndmask_b32 {vr(cl[0]+i)}, {vr(cl[0]+i)}, {vr(cur[0]+i)}, vcc")
                a(f"v_cndmask_b32 {vr(cl[1]+i)}, {vr(cl[1]+i)}, {vr(cur[1]+i)}, vcc")
    se = srd(a, R, P_WS, WS_E, 65536)
    a(f"v_and_b32 {vr(vt[0])}, 7, {vr(vLane)}")
    a(f"v_lshlrev_b32 {vr(vt[0])}, 5, {vr(vt[0])}")
    a(f"s_lshl_b32 {sr(st[0])}, {sr(sCB)}, 1")
    a(f"s_add_u32 {sr(st[0])}, {sr(st[0])}, {sr(sWn)}")
    a(f"s_lshl_b32 {sr(st[0])}, {sr(st[0])}, 8")
    a(f"v_add_u32 {vr(vt[0])}, {sr(st[0])}, {vr(vt[0])}")
    a(f"s_lshl_b32 {sr(st[1])}, {sr(sRB)}, 13")
    Lp = uid("Lpub")
    sx = R.S(2, 2)
    a(f"s_cmp_eq_u32 {sr(sWm)}, 0")
    a(f"s_cbranch_scc0 {Lp}")
    a(f"s_mov_b64 {sr(sx,2)}, exec")
    a("s_mov_b64 exec, 0xff")
    a(f"buffer_store_dwordx4 {vr(cur[0],4)}, {vr(vt[0])}, {sr(se,4)}, {sr(st[1])} offen sc1")
    a(f"buffer_store_dwordx4 {vr(cur[1],4)}, {vr(vt[0])}, {sr(se,4)}, {sr(st[1])} offen offset:16 sc1")
    a(f"s_mov_b64 exec, {sr(sx,2)}")
    a("s_waitcnt vmcnt(0)")
    a.label(Lp)
    a("s_barrier")
    Ls = uid("Lsig")
    a(f"s_cmp_eq_u32 {sr(sW)}, 0")
    a(f"s_cbranch_scc0 {Ls}")
    signal(a, R, sCB, C_S1B, sBit=sRB)
    a.label(Ls)
    sMask = R.S()
    a(f"s_lshl_b32 {sr(sMask)}, 1, {sr(sRB)}")
    a(f"s_sub_u32 {sr(sMask)}, {sr(sMask)}, 1")
    poll(a, R, sCB, C_S1B, 0, sMask=sMask)
    ca = u[0]; cb_ = u[1]
    for i in range(4):
        a(f"v_mov_b32 {vr(ca[0]+i)}, 0")
        a(f"v_mov_b32 {vr(ca[1]+i)}, 0")
    Lc = uid("Lcar"); Lce = uid("Lcare")
    a(f"s_mov_b32 {sr(st[2])}, 0")
    a.label(Lc)
    a(f"s_cmp_ge_u32 {sr(st[2])}, {sr(st[1])}")
    a(f"s_cbranch_scc1 {Lce}")
    a(f"buffer_load_dwordx4 {vr(eb[0][0],4)}, {vr(vt[0])}, {sr(se,4)}, {sr(st[2])} offen sc1")
    a(f"buffer_load_dwordx4 {vr(eb[0][1],4)}, {vr(vt[0])}, {sr(se,4)}, {sr(st[2])} offen offset:16 sc1")
    a("s_waitcnt vmcnt(0)")
    cmac_step(a, cb_[0], cb_[1], l256r, l256i, ca[0], ca[1], eb[0][0], eb[0][1])
    for i in range(4):
        a(f"v_mov_b32 {vr(ca[0]+i)}, {vr(cb_[0]+i)}")
        a(f"v_mov_b32 {vr(ca[1]+i)}, {vr(cb_[1]+i)}")
    a(f"s_add_u32 {sr(st[2])}, {sr(st[2])}, 8192")
    a(f"s_branch {Lc}")
    a.label(Lce)
    cmac_step(a, cb_[0], cb_[1], pwr, pwi, ca[0], ca[1], cl[0], cl[1])
    sa_ = vt[2]
    a(f"v_lshrrev_b32 {vr(vt[1])}, 3, {vr(vLane)}")
    a(f"v_mul_u32_u24 {vr(vt[1])}, 2112, {vr(vt[1])}")
    a(f"v_and_b32 {vr(sa_)}, 7, {vr(vLane)}")
    a(f"v_lshl_add_u32 {vr(sa_)}, {vr(sa_)}, 3, {vr(vt[1])}")
    a(f"v_add_u32 {vr(sa_)}, {sr(sWB)}, {vr(sa_)}")
    prev = cb_
    for j in range(16):
        for h in (0, 2):
            a(pk("fma", Xr(j) + h, lr + h, prev[0] + h, Xr(j) + h))
            a(pk("fma", Xi(j) + h, lr + h, prev[1] + h, Xi(j) + h))
        for h in (0, 2):
            a(pk("fma", Xr(j) + h, li + h, prev[1] + h, Xr(j) + h, neg=0))
            a(pk("fma", Xi(j) + h, li + h, prev[0] + h, Xi(j) + h))
        prev = (Xr(j), Xi(j))
        o = tq + 4 * (j & 1)
        cvt_pk(a, o, Xr(j), Xr(j) + 1); cvt_pk(a, o + 1, Xr(j) + 2, Xr(j) + 3)
        cvt_pk(a, o + 2, Xi(j), Xi(j) + 1); cvt_pk(a, o + 3, Xi(j) + 2, Xi(j) + 3)
        a(f"ds_write_b64 {vr(sa_)}, {vr(o,2)} offset:{j*128}")
        a(f"ds_write_b64 {vr(sa_)}, {vr(o+2,2)} offset:{j*128+64}")
    sh = srd(a, R, P_WS, WS_H, 8 << 20)
    a(f"v_lshrrev_b32 {vr(vt[0])}, 3, {vr(vLane)}")
    a(f"v_and_b32 {vr(vt[3])}, 7, {vr(vLane)}")
    a(f"v_lshlrev_b32 {vr(vt[1])}, 7, {vr(vt[0])}")
    a(f"v_lshl_add_u32 {vr(vt[1])}, {vr(vt[3])}, 4, {vr(vt[1])}")
    a(f"v_add_u32 {vr(vt[1])}, {sr(sWB)}, {vr(vt[1])}")
    a(f"v_lshlrev_b32 {vr(vt[0])}, 12, {vr(vt[0])}")
    a(f"v_lshrrev_b32 {vr(vt[2])}, 2, {vr(vt[3])}")
    a(f"v_lshl_add_u32 {vr(vt[0])}, {vr(vt[2])}, 11, {vr(vt[0])}")
    a(f"v_and_b32 {vr(vt[3])}, 3, {vr(vt[3])}")
    a(f"v_lshl_add_u32 {vr(vt[0])}, {vr(vt[3])}, 4, {vr(vt[0])}")
    a(f"s_lshl_b32 {sr(st[0])}, {sr(sRB)}, 1")
    a(f"s_add_u32 {sr(st[0])}, {sr(st[0])}, {sr(sWm)}")
    a(f"s_lshl_b32 {sr(st[0])}, {sr(st[0])}, 19")
    a(f"s_lshl_b32 {sr(st[1])}, {sr(sCB)}, 1")
    a(f"s_add_u32 {sr(st[1])}, {sr(st[1])}, {sr(sWn)}")
    a(f"s_lshl_b32 {sr(st[1])}, {sr(st[1])}, 6")
    a(f"s_add_u32 {sr(st[0])}, {sr(st[0])}, {sr(st[1])}")
    a(f"v_add_u32 {vr(vt[0])}, {sr(st[0])}, {vr(vt[0])}")
    a("s_waitcnt lgkmcnt(0)")
    for i in range(16):
        a(f"ds_read_b128 {vr(X+4*i,4)}, {vr(vt[1])} offset:{(i>>1)*2112 + (i&1)*1024}")
    for i in range(16):
        a(f"s_waitcnt lgkmcnt({min(15, 15-i)})")
        a(f"s_mov_b32 {sr(st[2])}, {i*8*4096}")
        a(f"buffer_store_dwordx4 {vr(X+4*i,4)}, {vr(vt[0])}, {sr(sh,4)}, {sr(st[2])} offen sc1")
    a("s_waitcnt vmcnt(0)")
    a("s_barrier")
    if mega:
        Ls = uid("Lsig")
        a(f"s_cmp_eq_u32 {sr(sW)}, 0")
        a(f"s_cbranch_scc0 {Ls}")
        signal(a, R, sRB, C_S2B)
        a.label(Ls)
    R.release(m0)

def B1_loader(a, R, mega):
    g = GB1
    m0 = R.mark()
    vt, st = temps(R)
    sKA, sKB, sLdW, sLdEnd, sTmp, sCnt = loader_common(a, R, g)
    sRow = R.S()
    a(f"s_lshl_b32 {sr(sRow)}, {sr(sRB)}, 8")
    a(f"s_lshl_b32 {sr(sKA)}, {sr(sRot)}, 7")
    a(f"s_mov_b32 {sr(sKB)}, {sr(sKA)}")
    pcs = x_pieces(a, R, g, P_BX, 2048, sRow, vt, st, sKA)
    sb = [srd(a, R, P_BRE), srd(a, R, P_BIM)]
    vP = vt[3]
    for t in range(g.nB):
        v = R.V()
        a(f"s_lshl_b32 {sr(st[0])}, {sr(sCB)}, 6")
        a(f"s_add_u32 {sr(st[0])}, {sr(st[0])}, {32*(t>>1)}")
        a(f"s_lshl_b32 {sr(st[0])}, {sr(st[0])}, 11")
        a(f"v_add_u32 {vr(v)}, {sr(st[0])}, {vr(vP)}")
        pcs.append((v, sb[t & 1], sKB, g.TM * 128 + t * 4096))
    loader_loop(a, g, pcs, adv_simple(a, g, sKA, sKB, 128, 128), sLdW, sLdEnd, sTmp, sCnt)
    for _ in range(3): a("s_barrier")
    R.release(m0)

def kernel(name, phasesA, phasesB, mega):
    a = Asm()
    a.raw(f".globl {name}\n.p2align 8\n.type {name},@function")
    a.label(name)
    Lend = uid("Lend")
    a("s_cmp_ge_u32 s2, 256")
    a(f"s_cbranch_scc1 {Lend}")
    a(f"s_load_dwordx16 s[{SP}:{SP+15}], s[0:1], 0")
    a(f"s_load_dwordx16 s[{SP+16}:{SP+31}], s[0:1], 64")
    a(f"v_and_b32 {vr(vLane)}, 63, v0")
    a("v_lshrrev_b32 v0, 6, v0")
    a(f"v_readfirstlane_b32 {sr(sW)}, v0")
    a("s_and_b32 s3, s2, 1")
    a(f"s_lshl_b32 {sr(sRB)}, s3, 2")
    a("s_bfe_u32 s3, s2, 0x20003")
    a(f"s_add_u32 {sr(sRB)}, {sr(sRB)}, s3")
    a("s_bfe_u32 s3, s2, 0x10001")
    a(f"s_lshl_b32 {sr(sCB)}, s3, 3")
    a("s_lshr_b32 s3, s2, 5")
    a(f"s_add_u32 {sr(sCB)}, {sr(sCB)}, s3")
    a(f"s_bfe_u32 {sr(sRot)}, s2, 0x40003")
    a(f"s_sub_u32 {sr(sLW)}, {sr(sW)}, 4")
    a("s_waitcnt lgkmcnt(0)")
    streams = {}
    vmax = 0; smax = 0
    for chain, phases in (("A", phasesA), ("B", phasesB)):
        for role in ("c", "l"):
            s = Asm(); R = Regs(VBASE, SBASE)
            prev = None
            for ph in phases:
                if ph == "A1": (A1_compute if role == "c" else A1_loader)(s, R, mega)
                elif ph == "A2":
                    if role == "c": A2_compute(s, R, mega)
                    else: A2_loader(s, R, mega, 2 if prev == "A1" else 0)
                elif ph == "A3": (P3_compute(s, R, False) if role == "c" else P3_loader(s, R, False, mega))
                elif ph == "B1": (B1_compute if role == "c" else B1_loader)(s, R, mega)
                elif ph == "B3": (P3_compute(s, R, True) if role == "c" else P3_loader(s, R, True, mega))
                prev = ph
            if role == "l" and phases and phases[-1] == "A1":
                s("s_barrier\ns_barrier")
            s("s_waitcnt vmcnt(0)")
            s("s_endpgm")
            streams[chain + role] = s
            vmax = max(vmax, R.vmax); smax = max(smax, R.smax)
        assert streams[chain + "c"].nbar == streams[chain + "l"].nbar, (chain, streams[chain + "c"].nbar, streams[chain + "l"].nbar)
    L = {k: uid("Ls" + k) for k in streams}
    a("s_bitcmp1_b32 s2, 2")
    LB = uid("LchB")
    a(f"s_cbranch_scc1 {LB}")
    a(f"s_cmp_ge_u32 {sr(sW)}, 4")
    a(f"s_cbranch_scc1 {L['Al']}")
    a(f"s_branch {L['Ac']}")
    a.label(LB)
    a(f"s_cmp_ge_u32 {sr(sW)}, 4")
    a(f"s_cbranch_scc1 {L['Bl']}")
    a(f"s_branch {L['Bc']}")
    for k in ("Al", "Bl", "Ac", "Bc"):
        a.label(L[k])
        a.extend(streams[k])
    a.label(Lend)
    a("s_endpgm")
    a.lines = fix_hazards(a.lines)
    vg = (vmax + 7) // 8 * 8
    kd = f""".amdhsa_kernel {name}
  .amdhsa_next_free_vgpr {vg}
  .amdhsa_next_free_sgpr {smax}
  .amdhsa_accum_offset {vg}
  .amdhsa_group_segment_fixed_size 0
  .amdhsa_kernarg_size 128
  .amdhsa_user_sgpr_count 2
  .amdhsa_user_sgpr_kernarg_segment_ptr 1
  .amdhsa_system_sgpr_workgroup_id_x 1
.end_amdhsa_kernel"""
    return a.text(), kd

HEADER = open("cdna_kernels/" + NAME + ".s.ref").read().split("; Override launch")[0]

def build(mode):
    LDS = 147456
    if mode == "multi":
        ks = [("k1_kernel", ["A1"], ["B1"]), ("k2_kernel", ["A2"], []), ("k3_kernel", ["A3"], ["B3"])]
        mega = False
    else:
        ks = [(NAME + "_kernel", ["A1", "A2", "A3"], ["B1", "B3"])]
        mega = True
    out = HEADER
    for (n, _, _) in ks:
        out += f"; @launch kernel={n} grid=(256,1,1) block=(512,1,1) lds={LDS}\n"
    out += '.amdgcn_target "amdgcn-amd-amdhsa--gfx950"\n.text\n'
    kds = []
    for (n, pa, pb) in ks:
        t, kd = kernel(n, pa, pb, mega)
        out += t; kds.append(kd)
    out += '.section .rodata,"a"\n'
    for kd in kds: out += ".p2align 6\n" + kd + "\n"
    return out

if __name__ == "__main__":
    mode = sys.argv[1] if len(sys.argv) > 1 else "multi"
    dst = sys.argv[2] if len(sys.argv) > 2 else f"cdna_kernels/{NAME}.s"
    open(dst, "w").write(build(mode))
    print("wrote", dst)
```

```python
from asmlib import *

class G:
    def __init__(s, TM, TN, WM, WN, NST, S, blay, ring=0):
        s.TM, s.TN, s.WM, s.WN, s.NST, s.S, s.blay, s.ring = TM, TN, WM, WN, NST, S, blay, ring
        s.M16 = TM // WM // 16
        s.N16 = TN // WN // 16
        s.STAGE = (TM + TN) * 128
        s.nA = TM // 32
        s.nB = TN // 32
        s.nD = s.nA + s.nB
        s.NH = 2 if s.M16 == 8 else 1
        s.H = s.M16 // s.NH

def read_setup(a, g, R, sWm, sWn, vLane, vt, st):
    v0_, v1_, v2_ = vt[:3]
    s0_ = st[0]
    rd = {}
    for (name, lay, T, sw, regoff) in (('A', 'MK', g.M16, sWm, 0), ('B', g.blay, g.N16, sWn, g.TM * 128)):
        if lay in ('MK', 'NK'):
            base = [R.V() for _ in range(2)]
            cur = [R.V() for _ in range(2)]
            a(f"v_and_b32 {vr(v0_)}, 15, {vr(vLane)}")
            a(f"v_lshlrev_b32 {vr(v0_)}, 7, {vr(v0_)}")
            a(f"v_lshrrev_b32 {vr(v1_)}, 4, {vr(vLane)}")
            a(f"v_bfe_u32 {vr(v2_)}, {vr(vLane)}, 1, 3")
            a(f"v_xor_b32 {vr(v1_)}, {vr(v1_)}, {vr(v2_)}")
            a(f"v_lshl_add_u32 {vr(v0_)}, {vr(v1_)}, 4, {vr(v0_)}")
            if sw is None:
                a(f"v_add_u32 {vr(v0_)}, {regoff + g.ring}, {vr(v0_)}")
            else:
                a(f"s_mul_i32 {sr(s0_)}, {sr(sw)}, {T*16*128}")
                a(f"s_add_u32 {sr(s0_)}, {sr(s0_)}, {regoff + g.ring}")
                a(f"v_add_u32 {vr(v0_)}, {sr(s0_)}, {vr(v0_)}")
            for k2 in range(2):
                a(f"v_xor_b32 {vr(base[k2])}, {k2*64}, {vr(v0_)}")
        else:
            assert T == 4
            base = [R.V() for _ in range(4)]
            cur = [R.V() for _ in range(4)]
            a(f"v_lshrrev_b32 {vr(v0_)}, 4, {vr(vLane)}")
            a(f"v_lshlrev_b32 {vr(v0_)}, 3, {vr(v0_)}")
            a(f"v_bfe_u32 {vr(v1_)}, {vr(vLane)}, 2, 2")
            a(f"v_add_u32 {vr(v0_)}, {vr(v0_)}, {vr(v1_)}")
            a(f"v_lshlrev_b32 {vr(v0_)}, 7, {vr(v0_)}")
            a(f"v_bfe_u32 {vr(v1_)}, {vr(vLane)}, 3, 2")
            a(f"v_lshl_add_u32 {vr(v0_)}, {vr(v1_)}, 5, {vr(v0_)}")
            a(f"v_and_b32 {vr(v1_)}, 3, {vr(vLane)}")
            a(f"v_lshl_add_u32 {vr(v0_)}, {vr(v1_)}, 3, {vr(v0_)}")
            if sw is None:
                a(f"v_add_u32 {vr(v0_)}, {regoff + g.ring}, {vr(v0_)}")
            else:
                a(f"s_lshl_b32 {sr(s0_)}, {sr(sw)}, 13")
                a(f"s_add_u32 {sr(s0_)}, {sr(s0_)}, {regoff + g.ring}")
                a(f"v_add_u32 {vr(v0_)}, {sr(s0_)}, {vr(v0_)}")
            for n in range(4):
                a(f"v_xor_b32 {vr(base[n])}, {n*32}, {vr(v0_)}")
        rd[name] = (base, cur)
    return rd

def addr_update(rd, sOff):
    out = []
    for name in ('A', 'B'):
        base, cur = rd[name]
        for b, cu in zip(base, cur):
            out.append(f"v_add_u32 {vr(cu)}, {sr(sOff)}, {vr(b)}")
    return out

def compute_loop(a, g, R, rd, acc, swapf, sRdOff, sCnt, pre_barrier=None, post_barrier=None):
    fA = [[R.V(4) for _ in range(g.H)] for _ in range(2)]
    fB = [[R.V(4) for _ in range(g.N16)] for _ in range(2)]
    for m in range(g.M16):
        for n in range(g.N16):
            for i in range(4):
                a(f"v_mov_b32 {vr(acc[m][n]+i)}, 0")
    a(f"s_mov_b32 {sr(sRdOff)}, 0")
    for x in addr_update(rd, sRdOff): a(x)
    if pre_barrier: pre_barrier()
    a("s_barrier")
    if post_barrier: post_barrier()
    def rdA(k2, h, stt):
        return [f"ds_read_b128 {vr(fA[stt][i],4)}, {vr(rd['A'][1][k2])} offset:{(h*g.H+i)*2048}" for i in range(g.H)]
    def rdB(k2, stt):
        if g.blay == 'NK':
            return [f"ds_read_b128 {vr(fB[stt][i],4)}, {vr(rd['B'][1][k2])} offset:{i*2048}" for i in range(g.N16)]
        out = []
        for n in range(g.N16):
            out.append(f"ds_read_b64_tr_b16 {vr(fB[stt][n],2)}, {vr(rd['B'][1][n])} offset:{(32*k2)*128}")
            out.append(f"ds_read_b64_tr_b16 {vr(fB[stt][n]+2,2)}, {vr(rd['B'][1][n])} offset:{(32*k2+4)*128}")
        return out
    def mf(h, sa, sb):
        out = []
        for i in range(g.H):
            for n in range(g.N16):
                m = h * g.H + i
                d = vr(acc[m][n], 4)
                if swapf(m, n):
                    out.append(f"v_mfma_f32_16x16x32_bf16 {d}, {vr(fB[sb][n],4)}, {vr(fA[sa][i],4)}, {d}")
                else:
                    out.append(f"v_mfma_f32_16x16x32_bf16 {d}, {vr(fA[sa][i],4)}, {vr(fB[sb][n],4)}, {d}")
        return out
    for x in rdA(0, 0, 0) + rdB(0, 0): a(x)
    a(f"s_mov_b32 {sr(sCnt)}, 0")
    L = uid("Lmm")
    a.label(L)
    nb0 = a.nbar
    NP = 2 * g.NH
    for p in range(NP):
        k2, h = p // g.NH, p % g.NH
        a("s_waitcnt lgkmcnt(0)")
        m = mf(h, p & 1, k2)
        if p < NP - 1:
            nk2, nh = (p + 1) // g.NH, (p + 1) % g.NH
            fill = rdA(nk2, nh, (p + 1) & 1)
            if nh == 0: fill = fill + rdB(nk2, nk2)
            if p == NP - 2:
                fill = fill + [f"s_add_u32 {sr(sRdOff)}, {sr(sRdOff)}, {g.STAGE}\ns_cmp_ge_u32 {sr(sRdOff)}, {g.STAGE*g.NST}\ns_cselect_b32 {sr(sRdOff)}, 0, {sr(sRdOff)}"]
            k = 0
            for i, x in enumerate(m):
                a(x)
                if k < len(fill):
                    a(fill[k]); k += 1
            assert k == len(fill)
        else:
            au = addr_update(rd, sRdOff)
            nb = len(m) // 2
            k = 0
            for x in m[:nb]:
                a(x)
                if k < len(au):
                    a(au[k]); k += 1
            assert k == len(au)
            a("s_barrier")
            fill = rdA(0, 0, 0) + rdB(0, 0)
            k = 0
            rest = m[nb:]
            per = (len(fill) + len(rest) - 1) // len(rest)
            for x in rest:
                for _ in range(per):
                    if k < len(fill):
                        a(fill[k]); k += 1
                a(x)
    a(f"s_add_u32 {sr(sCnt)}, {sr(sCnt)}, 1")
    a(f"s_cmp_lt_u32 {sr(sCnt)}, {g.S}")
    a(f"s_cbranch_scc1 {L}")
    a.nbar += g.S - 1
    a("s_waitcnt lgkmcnt(0)")

def lanepat_rows(a, vP, vt, vLane, sLW, ld, st):
    v1_ = vt[0]
    s0_, s1_ = st[:2]
    a(f"v_lshrrev_b32 {vr(vP)}, 3, {vr(vLane)}")
    a(f"s_mov_b32 {sr(s0_)}, {ld}")
    a(f"v_mul_lo_u32 {vr(vP)}, {vr(vP)}, {sr(s0_)}")
    a(f"v_lshrrev_b32 {vr(v1_)}, 4, {vr(vLane)}")
    a(f"v_xor_b32 {vr(v1_)}, {vr(v1_)}, {vr(vLane)}")
    a(f"v_and_b32 {vr(v1_)}, 7, {vr(v1_)}")
    a(f"s_and_b32 {sr(s0_)}, {sr(sLW)}, 1")
    a(f"s_lshl_b32 {sr(s0_)}, {sr(s0_)}, 2")
    a(f"v_xor_b32 {vr(v1_)}, {sr(s0_)}, {vr(v1_)}")
    a(f"v_lshl_add_u32 {vr(vP)}, {vr(v1_)}, 4, {vr(vP)}")
    a(f"s_mul_i32 {sr(s0_)}, {sr(sLW)}, {8*ld}")
    a(f"v_add_u32 {vr(vP)}, {sr(s0_)}, {vr(vP)}")

def lanepat_kn(a, vP, vt, vLane, sLW, ld, st, split=None):
    v1_, v2_ = vt[:2]
    s0_ = st[0]
    a(f"v_lshrrev_b32 {vr(vP)}, 3, {vr(vLane)}")
    a(f"s_lshl_b32 {sr(s0_)}, {sr(sLW)}, 3")
    a(f"v_add_u32 {vr(vP)}, {sr(s0_)}, {vr(vP)}")
    a(f"s_mov_b32 {sr(s0_)}, {ld}")
    a(f"v_mul_lo_u32 {vr(vP)}, {vr(vP)}, {sr(s0_)}")
    a(f"v_lshrrev_b32 {vr(v1_)}, 3, {vr(vLane)}")
    a(f"v_and_b32 {vr(v1_)}, 2, {vr(v1_)}")
    a(f"v_xor_b32 {vr(v1_)}, {vr(v1_)}, {vr(vLane)}")
    a(f"v_and_b32 {vr(v1_)}, 7, {vr(v1_)}")
    a(f"s_and_b32 {sr(s0_)}, {sr(sLW)}, 1")
    a(f"s_lshl_b32 {sr(s0_)}, {sr(s0_)}, 2")
    a(f"v_xor_b32 {vr(v1_)}, {sr(s0_)}, {vr(v1_)}")
    if split is None:
        a(f"v_lshl_add_u32 {vr(vP)}, {vr(v1_)}, 4, {vr(vP)}")
    else:
        a(f"v_and_b32 {vr(v2_)}, 3, {vr(v1_)}")
        a(f"v_lshl_add_u32 {vr(vP)}, {vr(v2_)}, 4, {vr(vP)}")
        a(f"v_lshrrev_b32 {vr(v2_)}, 2, {vr(v1_)}")
        a(f"s_mov_b32 {sr(s0_)}, {split}")
        a(f"v_mul_lo_u32 {vr(v2_)}, {vr(v2_)}, {sr(s0_)}")
        a(f"v_add_u32 {vr(vP)}, {vr(vP)}, {vr(v2_)}")

def loader_loop(a, g, pieces, advance, sLdW, sLdEnd, sTmp, sCnt, after_prologue=None, tail_work=None, dma_mod=""):
    n = len(pieces)
    def issue():
        for pi, (v, srd, so, lo) in enumerate(pieces):
            a(f"s_add_u32 m0, {sr(sLdW)}, {lo}")
            a(f"buffer_load_dwordx4 {vr(v)}, {sr(srd,4)}, {sr(so)} offen{dma_mod if pi < g.nA else ''} lds")
        advance()
        a(f"s_add_u32 {sr(sLdW)}, {sr(sLdW)}, {g.STAGE}")
        a(f"s_cmp_ge_u32 {sr(sLdW)}, {sr(sLdEnd)}")
        a(f"s_cselect_b32 {sr(sTmp)}, {g.STAGE*g.NST}, 0")
        a(f"s_sub_u32 {sr(sLdW)}, {sr(sLdW)}, {sr(sTmp)}")
    pre = g.NST - 1
    for _ in range(pre): issue()
    if after_prologue: after_prologue()
    a(f"s_waitcnt vmcnt({(pre-1)*n})")
    a("s_barrier")
    nst = g.S - pre
    a(f"s_mov_b32 {sr(sCnt)}, 0")
    L = uid("Lld")
    a.label(L)
    issue()
    a(f"s_waitcnt vmcnt({(pre-1)*n})")
    a("s_barrier")
    a(f"s_add_u32 {sr(sCnt)}, {sr(sCnt)}, 1")
    a(f"s_cmp_lt_u32 {sr(sCnt)}, {nst}")
    a(f"s_cbranch_scc1 {L}")
    a.nbar += nst - 1
    for s in range(g.S - pre, g.S - 1):
        remaining = g.S - 1 - (s + 1)
        a(f"s_waitcnt vmcnt({remaining*n})")
        a("s_barrier")
    if tail_work: tail_work()
    a("s_barrier")

class CLoop:
    def __init__(s, a, R, M16, N16, blay, rd, acc, swapf, sOffA, sOffB, adv):
        s.a, s.M16, s.N16, s.blay, s.rd, s.acc, s.swapf = a, M16, N16, blay, rd, acc, swapf
        s.NH = 2 if M16 == 8 else 1
        s.H = M16 // s.NH
        s.sOffA, s.sOffB, s.adv = sOffA, sOffB, adv
        s.fA = [[R.V(4) for _ in range(s.H)] for _ in range(2)]
        s.fB = [[R.V(4) for _ in range(N16)] for _ in range(2)]
    def au(s):
        out = []
        for name, so in (('A', s.sOffA), ('B', s.sOffB)):
            base, cur = s.rd[name]
            for b, cu in zip(base, cur):
                out.append(f"v_add_u32 {vr(cu)}, {sr(so)}, {vr(b)}")
        return out
    def rdA(s, k2, h, stt):
        return [f"ds_read_b128 {vr(s.fA[stt][i],4)}, {vr(s.rd['A'][1][k2])} offset:{(h*s.H+i)*2048}" for i in range(s.H)]
    def rdB(s, k2, stt):
        if s.blay == 'NK':
            return [f"ds_read_b128 {vr(s.fB[stt][i],4)}, {vr(s.rd['B'][1][k2])} offset:{i*2048}" for i in range(s.N16)]
        out = []
        for n in range(s.N16):
            out.append(f"ds_read_b64_tr_b16 {vr(s.fB[stt][n],2)}, {vr(s.rd['B'][1][n])} offset:{(32*k2)*128}")
            out.append(f"ds_read_b64_tr_b16 {vr(s.fB[stt][n]+2,2)}, {vr(s.rd['B'][1][n])} offset:{(32*k2+4)*128}")
        return out
    def mf(s, h, sa, sb):
        out = []
        for i in range(s.H):
            for n in range(s.N16):
                m = h * s.H + i
                d = vr(s.acc[m][n], 4)
                if s.swapf(m, n):
                    out.append(f"v_mfma_f32_16x16x32_bf16 {d}, {vr(s.fB[sb][n],4)}, {vr(s.fA[sa][i],4)}, {d}")
                else:
                    out.append(f"v_mfma_f32_16x16x32_bf16 {d}, {vr(s.fA[sa][i],4)}, {vr(s.fB[sb][n],4)}, {d}")
        return out
    def zero(s):
        for m in range(s.M16):
            for n in range(s.N16):
                for i in range(4):
                    s.a(f"v_mov_b32 {vr(s.acc[m][n]+i)}, 0")
    def first_reads(s):
        for x in s.rdA(0, 0, 0) + s.rdB(0, 0): s.a(x)
    def body(s, extra=(), prewait=None, post=()):
        a = s.a
        NP = 2 * s.NH
        extra = list(extra)
        for p in range(NP):
            k2, h = p // s.NH, p % s.NH
            a("s_waitcnt lgkmcnt(0)")
            m = s.mf(h, p & 1, k2)
            if p < NP - 1:
                nk2, nh = (p + 1) // s.NH, (p + 1) % s.NH
                fill = s.rdA(nk2, nh, (p + 1) & 1)
                if nh == 0: fill = fill + s.rdB(nk2, nk2)
                if p == 0: fill = fill + extra
                if p == NP - 2: fill = fill + [s.adv]
                per = (len(fill) + len(m) - 1) // len(m)
                k = 0
                for x in m:
                    a(x)
                    for _ in range(per):
                        if k < len(fill):
                            a(fill[k]); k += 1
                assert k == len(fill)
            else:
                au = s.au()
                nb = len(m) // 2
                k = 0
                for x in m[:nb]:
                    a(x)
                    if k < len(au):
                        a(au[k]); k += 1
                assert k == len(au)
                if prewait: a(prewait)
                a("s_barrier")
                for x in post: a(x)
                fill = s.rdA(0, 0, 0) + s.rdB(0, 0)
                k = 0
                rest = m[nb:]
                per = (len(fill) + len(rest) - 1) // len(rest)
                for x in rest:
                    for _ in range(per):
                        if k < len(fill):
                            a(fill[k]); k += 1
                    a(x)
    def loop(s, n, sCnt, **kw):
        a = s.a
        a(f"s_mov_b32 {sr(sCnt)}, 0")
        L = uid("Lmm")
        a.label(L)
        s.body(**kw)
        a(f"s_add_u32 {sr(sCnt)}, {sr(sCnt)}, 1")
        a(f"s_cmp_lt_u32 {sr(sCnt)}, {n}")
        a(f"s_cbranch_scc1 {L}")
        a.nbar += n - 1

def rd_MK(a, R, vLane, vt, sRowOff, const):
    v0_, v1_, v2_ = vt[:3]
    base = [R.V() for _ in range(2)]
    cur = [R.V() for _ in range(2)]
    a(f"v_and_b32 {vr(v0_)}, 15, {vr(vLane)}")
    a(f"v_lshlrev_b32 {vr(v0_)}, 7, {vr(v0_)}")
    a(f"v_lshrrev_b32 {vr(v1_)}, 4, {vr(vLane)}")
    a(f"v_bfe_u32 {vr(v2_)}, {vr(vLane)}, 1, 3")
    a(f"v_xor_b32 {vr(v1_)}, {vr(v1_)}, {vr(v2_)}")
    a(f"v_lshl_add_u32 {vr(v0_)}, {vr(v1_)}, 4, {vr(v0_)}")
    if sRowOff is not None: a(f"v_add_u32 {vr(v0_)}, {sr(sRowOff)}, {vr(v0_)}")
    if const: a(f"v_add_u32 {vr(v0_)}, {const}, {vr(v0_)}")
    for k2 in range(2):
        a(f"v_xor_b32 {vr(base[k2])}, {k2*64}, {vr(v0_)}")
    return (base, cur)

def rd_KN(a, R, vLane, vt, const):
    v0_, v1_ = vt[:2]
    base = [R.V() for _ in range(4)]
    cur = [R.V() for _ in range(4)]
    a(f"v_lshrrev_b32 {vr(v0_)}, 4, {vr(vLane)}")
    a(f"v_lshlrev_b32 {vr(v0_)}, 3, {vr(v0_)}")
    a(f"v_bfe_u32 {vr(v1_)}, {vr(vLane)}, 2, 2")
    a(f"v_add_u32 {vr(v0_)}, {vr(v0_)}, {vr(v1_)}")
    a(f"v_lshlrev_b32 {vr(v0_)}, 7, {vr(v0_)}")
    a(f"v_bfe_u32 {vr(v1_)}, {vr(vLane)}, 3, 2")
    a(f"v_lshl_add_u32 {vr(v0_)}, {vr(v1_)}, 5, {vr(v0_)}")
    a(f"v_and_b32 {vr(v1_)}, 3, {vr(vLane)}")
    a(f"v_lshl_add_u32 {vr(v0_)}, {vr(v1_)}, 3, {vr(v0_)}")
    if const: a(f"v_add_u32 {vr(v0_)}, {const}, {vr(v0_)}")
    for n in range(4):
        a(f"v_xor_b32 {vr(base[n])}, {n*32}, {vr(v0_)}")
    return (base, cur)

def merge(*streams):
    out = []
    idx = [0] * len(streams)
    while any(i < len(s) for i, s in zip(idx, streams)):
        for k, s in enumerate(streams):
            if idx[k] < len(s):
                out.append(s[idx[k]]); idx[k] += 1
    return out
```

```python
import sys, math
from asmlib import *
from core import *

NAME = "concat_heads__linear_kernel_hedgehog__ssm_conv_s5__prompt"
P_AX, P_WQKV, P_WPHI, P_WO, P_BX, P_LRE, P_LIM, P_BRE, P_BIM, P_CRE, P_CIM, P_LDT, P_DSK, P_OUT, P_DBG, P_WS = range(16)
SZ = {P_AX: 4 << 20, P_WQKV: 6 << 20, P_WPHI: 65536, P_WO: 2 << 20, P_BX: 4 << 20, P_LRE: 2048, P_LIM: 2048,
      P_BRE: 2 << 20, P_BIM: 2 << 20, P_CRE: 2 << 20, P_CIM: 2 << 20, P_LDT: 2048, P_DSK: 2048, P_OUT: 16 << 20,
      P_DBG: 256, P_WS: 256 << 20}
WS_KVP = 0
WS_O = 4 << 20
WS_E = 8 << 20
WS_H = 16 << 20
C_S1A, C_S1B, C_S2A, C_S2B = 0, 16, 32, 40
LOG2E = 0x3fb8aa3b

SP = 4
def sptr(i): return SP + 2 * i
sW, sRB, sCB, sRot, sWm, sWn, sLW = 36, 37, 38, 39, 40, 41, 42
SBASE = 44
vLane = 1
VBASE = 2

STAMPS = False
MIX = False
PFW = True
MAPA = False
QPRIO = False
ROT3 = 1
ST0 = 76
NST_ = 15
def stamp(a, i):
    if STAMPS:
        a(f"s_waitcnt lgkmcnt(0)\ns_memrealtime s[98:99]\ns_waitcnt lgkmcnt(0)\ns_mov_b32 {sr(ST0+i)}, s98")
def stamp_flush(a, kidx):
    if not STAMPS: return
    a(f"s_add_u32 s44, {sr(sptr(P_WS))}, {(32<<20) + kidx*(1<<20)}")
    a(f"s_addc_u32 s45, {sr(sptr(P_WS)+1)}, 0")
    a("s_mov_b32 s46, 0x100000\ns_mov_b32 s47, 0x20000")
    a(f"s_lshl_b32 s3, s2, 3\ns_add_u32 s3, s3, {sr(sW)}\ns_lshl_b32 s3, s3, 7")
    a("v_mov_b32 v2, s3")
    a("s_mov_b64 exec, 1")
    for i in range(NST_):
        a(f"v_mov_b32 v4, {sr(ST0+i)}\nv_mov_b32 v5, 0")
        a(f"buffer_store_dwordx2 v[4:5], v2, s[44:47], 0 offen offset:{i*8}")
        a("s_waitcnt vmcnt(0)")

def srd(a, R, p, off=0, size=None):
    s = R.S(4, 4)
    if off:
        a(f"s_add_u32 {sr(s)}, {sr(sptr(p))}, {off}")
        a(f"s_addc_u32 {sr(s+1)}, {sr(sptr(p)+1)}, 0")
    else:
        a(f"s_mov_b32 {sr(s)}, {sr(sptr(p))}")
        a(f"s_mov_b32 {sr(s+1)}, {sr(sptr(p)+1)}")
    a(f"s_mov_b32 {sr(s+2)}, {size if size is not None else SZ[p] - off}")
    a(f"s_mov_b32 {sr(s+3)}, 0x20000")
    return s

def temps(R, nv=4, ns=4):
    return [R.V() for _ in range(nv)], [R.S(1, 2)] + [R.S() for _ in range(ns - 1)]

def cvt_pk(a, d, x, y):
    a(f"v_cvt_pk_bf16_f32 {vr(d)}, {vr(x)}, {vr(y)}")

WS_MB = 9 << 20
S1A, S1B, S2A, S2B = 0, 1, 2, 3
sNon = 43
NONL = 150 * 1024 + 16
TAGK = 0x5bd1e995

def nonce_issue(a, R, vt):
    assert vt[0] % 2 == 0 and vt[1] == vt[0] + 1
    m = R.mark()
    Ln = uid("Lni")
    a(f"s_cmp_eq_u32 {sr(sW)}, 0")
    a(f"s_cbranch_scc0 {Ln}")
    sd = srd(a, R, P_DBG)
    sx = R.S(2, 2)
    a(f"s_memrealtime {sr(sx,2)}")
    a("s_waitcnt lgkmcnt(0)")
    a(f"s_or_b32 {sr(sNon)}, {sr(sx)}, 1")
    a(f"v_mov_b32 {vr(vt[0])}, {sr(sNon)}")
    a(f"v_mov_b32 {vr(vt[1])}, 0")
    a(f"v_mov_b32 {vr(vt[2])}, 0")
    a(f"s_mov_b64 {sr(sx,2)}, exec")
    a("s_mov_b64 exec, 1")
    a(f"buffer_atomic_cmpswap {vr(vt[0],2)}, {vr(vt[2])}, {sr(sd,4)}, 0 offen sc0 sc1")
    a(f"s_mov_b64 exec, {sr(sx,2)}")
    a.label(Ln)
    R.release(m)

def nonce_finish(a, R, vt):
    m = R.mark()
    s0 = R.S()
    L = uid("Lnf")
    a(f"s_cmp_eq_u32 {sr(sW)}, 0")
    a(f"s_cbranch_scc0 {L}")
    a("s_waitcnt vmcnt(0)")
    a(f"v_readfirstlane_b32 {sr(s0)}, {vr(vt[0])}")
    a(f"s_cmp_eq_u32 {sr(s0)}, 0")
    a(f"s_cselect_b32 {sr(sNon)}, {sr(sNon)}, {sr(s0)}")
    a(f"v_mov_b32 {vr(vt[1])}, {NONL}")
    a(f"v_mov_b32 {vr(vt[0])}, {sr(sNon)}")
    a(f"ds_write_b32 {vr(vt[1])}, {vr(vt[0])}")
    a("s_waitcnt lgkmcnt(0)")
    a.label(L)
    R.release(m)

def nonce_fetch(a, R):
    m = R.mark()
    v0_ = R.V()
    a(f"v_mov_b32 {vr(v0_)}, {NONL}")
    a(f"ds_read_b32 {vr(v0_)}, {vr(v0_)}")
    a("s_waitcnt lgkmcnt(0)")
    a(f"v_readfirstlane_b32 {sr(sNon)}, {vr(v0_)}")
    R.release(m)

def signal(a, R, sync):
    m = R.mark()
    sd = srd(a, R, P_WS, WS_MB, 65536)
    v0_ = R.V(); v2 = R.V(2)
    sx = R.S(2, 2)
    byrb = sync in (S1A, S1B)
    n = 8 if byrb else 16
    if byrb:
        a(f"v_lshlrev_b32 {vr(v0_)}, 11, {vr(vLane)}")
        a(f"s_lshl_b32 {sr(sx)}, {sr(sCB)}, 7")
        a(f"s_lshl_b32 {sr(sx+1)}, {sr(sRB)}, 3")
    else:
        a(f"v_lshlrev_b32 {vr(v0_)}, 7, {vr(vLane)}")
        a(f"s_lshl_b32 {sr(sx)}, {sr(sRB)}, 11")
        a(f"s_lshl_b32 {sr(sx+1)}, {sr(sCB)}, 3")
    a(f"s_add_u32 {sr(sx)}, {sr(sx)}, {sr(sx+1)}")
    a(f"s_add_u32 {sr(sx)}, {sr(sx)}, {sync*16384}")
    a(f"v_add_u32 {vr(v0_)}, {sr(sx)}, {vr(v0_)}")
    a(f"v_mov_b32 {vr(v2)}, {sr(sNon)}")
    a(f"v_xor_b32 {vr(v2+1)}, {TAGK}, {vr(v2)}")
    a(f"s_mov_b64 {sr(sx,2)}, exec")
    a(f"s_mov_b64 exec, {(1<<n)-1}")
    a(f"buffer_store_dwordx2 {vr(v2,2)}, {vr(v0_)}, {sr(sd,4)}, 0 offen sc1")
    a(f"s_mov_b64 exec, {sr(sx,2)}")
    R.release(m)

def poll(a, R, sync, sMask=None):
    m = R.mark()
    sd = srd(a, R, P_WS, WS_MB, 65536)
    v0_ = R.V(); v2 = R.V(2)
    sx = R.S(2, 2); sn = R.S(); sk = R.S(); sm = R.S()
    n = 8 if sync in (S1A, S1B) else 16
    a(f"s_lshl_b32 {sr(sx)}, {sr(sRB)}, 11")
    a(f"s_lshl_b32 {sr(sx+1)}, {sr(sCB)}, 7")
    a(f"s_add_u32 {sr(sx)}, {sr(sx)}, {sr(sx+1)}")
    a(f"s_add_u32 {sr(sx)}, {sr(sx)}, {sync*16384}")
    a(f"v_and_b32 {vr(v0_)}, 15, {vr(vLane)}")
    a(f"v_lshlrev_b32 {vr(v0_)}, 3, {vr(v0_)}")
    a(f"v_add_u32 {vr(v0_)}, {sr(sx)}, {vr(v0_)}")
    a(f"s_xor_b32 {sr(sk)}, {sr(sNon)}, {TAGK}")
    if sMask is None: a(f"s_mov_b32 {sr(sm)}, {(1<<n)-1}")
    else: a(f"s_mov_b32 {sr(sm)}, {sr(sMask)}")
    a(f"s_mov_b32 {sr(sn)}, 0")
    L = uid("Lpoll"); Ld = uid("Lpolld")
    a.label(L)
    a(f"buffer_load_dwordx2 {vr(v2,2)}, {vr(v0_)}, {sr(sd,4)}, 0 offen sc1")
    a("s_waitcnt vmcnt(0)")
    a(f"v_cmp_eq_u32 vcc, {sr(sNon)}, {vr(v2)}")
    a(f"v_cmp_eq_u32 {sr(sx,2)}, {sr(sk)}, {vr(v2+1)}")
    a(f"s_and_b32 {sr(sx)}, {sr(sx)}, vcc_lo")
    a(f"s_and_b32 {sr(sx)}, {sr(sx)}, {sr(sm)}")
    a(f"s_cmp_eq_u32 {sr(sx)}, {sr(sm)}")
    a(f"s_cbranch_scc1 {Ld}")
    a("s_sleep 3")
    a(f"s_add_u32 {sr(sn)}, {sr(sn)}, 1")
    a(f"s_cmp_lt_u32 {sr(sn)}, 0x40000")
    a(f"s_cbranch_scc1 {L}")
    a.label(Ld)
    R.release(m)

def wphi_frags(a, R, sHead, vt, st, tmp16):
    m = R.mark()
    out = None
    sd = srd(a, R, P_WPHI)
    R.release((R.v, m[1]))
    fr = [R.V(4), R.V(4)]
    v0_, v1_ = vt[:2]
    a(f"v_lshrrev_b32 {vr(v0_)}, 4, {vr(vLane)}")
    a(f"v_lshlrev_b32 {vr(v0_)}, 8, {vr(v0_)}")
    a(f"v_and_b32 {vr(v1_)}, 15, {vr(vLane)}")
    a(f"v_lshl_add_u32 {vr(v0_)}, {vr(v1_)}, 1, {vr(v0_)}")
    a(f"s_lshl_b32 {sr(st[0])}, {sr(sHead)}, 11")
    for ft in range(2):
        for j in range(8):
            d = 16 * (j >> 2) + (j & 3)
            a(f"buffer_load_ushort {vr(tmp16+ft*8+j)}, {vr(v0_)}, {sr(sd,4)}, {sr(st[0])} offen offset:{(d*32+16*ft)*2}")
    a("s_waitcnt vmcnt(0)")
    for ft in range(2):
        for jj in range(4):
            a(f"v_lshl_or_b32 {vr(fr[ft]+jj)}, {vr(tmp16+ft*8+2*jj+1)}, 16, {vr(tmp16+ft*8+2*jj)}")
    return fr

def xreduce(a, op, x, t):
    for sw in ("v_permlane16_swap_b32", "v_permlane32_swap_b32"):
        a(f"v_mov_b32 {vr(t)}, {vr(x)}")
        a(f"{sw} {vr(x)}, {vr(t)}")
        a(f"{op} {vr(x)}, {vr(x)}, {vr(t)}")

def feature_map(a, xT0, xT1, wfr, tmp, phP, phM, sL):
    kB = tmp; P = tmp + 4; E = tmp + 12; mx = tmp + 20; mn = tmp + 21; t0 = tmp + 22; sp = tmp + 23; sm = tmp + 24; t1 = tmp + 25
    cvt_pk(a, kB, xT0, xT0 + 1); cvt_pk(a, kB + 1, xT0 + 2, xT0 + 3)
    cvt_pk(a, kB + 2, xT1, xT1 + 1); cvt_pk(a, kB + 3, xT1 + 2, xT1 + 3)
    for ft in range(2):
        a(f"v_mfma_f32_16x16x32_bf16 {vr(P+4*ft,4)}, {vr(wfr[ft],4)}, {vr(kB,4)}, 0")
    for i in range(4):
        cvt_pk(a, E + i, P + 2 * i, P + 2 * i + 1)
    for i in range(4):
        a(f"v_lshlrev_b32 {vr(P+2*i)}, 16, {vr(E+i)}")
        a(f"v_and_b32 {vr(P+2*i+1)}, 0xffff0000, {vr(E+i)}")
    a(f"v_max3_f32 {vr(mx)}, {vr(P)}, {vr(P+1)}, {vr(P+2)}")
    a(f"v_min3_f32 {vr(mn)}, {vr(P)}, {vr(P+1)}, {vr(P+2)}")
    a(f"v_max3_f32 {vr(mx)}, {vr(mx)}, {vr(P+3)}, {vr(P+4)}")
    a(f"v_min3_f32 {vr(mn)}, {vr(mn)}, {vr(P+3)}, {vr(P+4)}")
    a(f"v_max3_f32 {vr(mx)}, {vr(mx)}, {vr(P+5)}, {vr(P+6)}")
    a(f"v_min3_f32 {vr(mn)}, {vr(mn)}, {vr(P+5)}, {vr(P+6)}")
    a(f"v_max_f32 {vr(mx)}, {vr(mx)}, {vr(P+7)}")
    a(f"v_min_f32 {vr(mn)}, {vr(mn)}, {vr(P+7)}")
    xreduce(a, "v_max_f32", mx, t0)
    xreduce(a, "v_min_f32", mn, t1)
    for (sgn, ph, ref, s_) in ((0, phP, mx, sp), (1, phM, mn, sm)):
        for i in range(8):
            if sgn == 0: a(f"v_sub_f32 {vr(E+i)}, {vr(P+i)}, {vr(ref)}")
            else: a(f"v_sub_f32 {vr(E+i)}, {vr(ref)}, {vr(P+i)}")
        for i in range(8):
            a(f"v_mul_f32 {vr(E+i)}, {sr(sL)}, {vr(E+i)}")
        for i in range(8):
            a(f"v_exp_f32 {vr(E+i)}, {vr(E+i)}")
        a(f"v_add_f32 {vr(s_)}, {vr(E)}, {vr(E+1)}")
        a(f"v_add_f32 {vr(t0)}, {vr(E+2)}, {vr(E+3)}")
        a(f"v_add_f32 {vr(t1)}, {vr(E+4)}, {vr(E+5)}")
        a(f"v_add_f32 {vr(s_)}, {vr(s_)}, {vr(t0)}")
        a(f"v_add_f32 {vr(t0)}, {vr(E+6)}, {vr(E+7)}")
        a(f"v_add_f32 {vr(s_)}, {vr(s_)}, {vr(t1)}")
        a(f"v_add_f32 {vr(s_)}, {vr(s_)}, {vr(t0)}")
        xreduce(a, "v_add_f32", s_, t0)
        a(f"v_rcp_f32 {vr(s_)}, {vr(s_)}")
        for i in range(8):
            a(f"v_mul_f32 {vr(E+i)}, {vr(E+i)}, {vr(s_)}")
        for i in range(4):
            cvt_pk(a, ph + i, E + 2 * i, E + 2 * i + 1)

GA1 = G(256, 128, 2, 2, 3, 16, 'KN')
GA2 = G(256, 64, 4, 1, 3, 16, 'KN')
GA3 = G(128, 128, 2, 2, 5, 16, 'KN')
GB1 = G(256, 128, 2, 2, 3, 16, 'NK')
GB3 = G(128, 128, 2, 2, 5, 32, 'NK')
SCR = 120 * 1024

def A1_compute(a, R, mega):
    g = GA1
    m0 = R.mark()
    vt, st = temps(R)
    sRd, sCnt, sL, sHead = R.S(), R.S(), R.S(), R.S()
    a(f"s_lshr_b32 {sr(sWm)}, {sr(sW)}, 1")
    a(f"s_and_b32 {sr(sWn)}, {sr(sW)}, 1")
    a(f"s_lshl_b32 {sr(sHead)}, {sr(sCB)}, 1")
    a(f"s_add_u32 {sr(sHead)}, {sr(sHead)}, {sr(sWn)}")
    a(f"s_mov_b32 {sr(sL)}, {LOG2E}")
    acc = [[R.V(4) for _ in range(4)] for _ in range(8)]
    wfr = wphi_frags(a, R, sHead, vt, st, acc[0][0])
    m1 = R.mark()
    rd = read_setup(a, g, R, sWm, sWn, vLane, vt, st)
    nonce_issue(a, R, vt)
    compute_loop(a, g, R, rd, acc, lambda m, n: n < 2, sRd, sCnt, pre_barrier=lambda: stamp(a, 1), post_barrier=lambda: stamp(a, 2))
    nonce_finish(a, R, vt)
    R.release(m1)
    stamp(a, 3)
    tmp = R.V(28, 4)
    ph = [R.V(4), R.V(4)]
    ident = [R.V(4), R.V(4)]
    ones = R.V(4)
    T = [[R.V(4) for _ in range(4)] for _ in range(2)]
    Af = R.V(4); Bv = [R.V(4), R.V(4)]
    kv = [[None] * 3 for _ in range(4)]
    a(f"v_and_b32 {vr(vt[0])}, 15, {vr(vLane)}")
    a(f"v_lshrrev_b32 {vr(vt[1])}, 4, {vr(vLane)}")
    a(f"v_lshlrev_b32 {vr(vt[1])}, 2, {vr(vt[1])}")
    a(f"v_sub_u32 {vr(vt[0])}, {vr(vt[0])}, {vr(vt[1])}")
    a(f"v_mov_b32 {vr(vt[2])}, 0x3f80")
    a(f"v_mov_b32 {vr(vt[3])}, 0x3f800000")
    for ft in range(2):
        for jj in range(4):
            if (jj >> 1) != ft:
                a(f"v_mov_b32 {vr(ident[ft]+jj)}, 0")
            else:
                lo = 2 * (jj & 1)
                a(f"v_cmp_eq_u32 vcc, {lo}, {vr(vt[0])}")
                a(f"v_cndmask_b32 {vr(ident[ft]+jj)}, 0, {vr(vt[2])}, vcc")
                a(f"v_cmp_eq_u32 vcc, {lo+1}, {vr(vt[0])}")
                a(f"v_cndmask_b32 {vr(ident[ft]+jj)}, {vr(ident[ft]+jj)}, {vr(vt[3])}, vcc")
    for i in range(4):
        a(f"v_mov_b32 {vr(ones+i)}, 0x3f803f80")
    first = True
    for sp_ in range(4):
        for h in range(2):
            stt = 2 * sp_ + h
            feature_map(a, acc[stt][0], acc[stt][1], wfr, tmp, ph[0], ph[1], sL)
            for sgn in range(2):
                for ft in range(2):
                    a(f"v_mfma_f32_16x16x32_bf16 {vr(T[h][2*sgn+ft],4)}, {vr(ph[sgn],4)}, {vr(ident[ft],4)}, 0")
        if first:
            pool = [acc[0][0], acc[0][1], acc[1][0], acc[1][1], acc[0][2], acc[0][3], acc[1][2], acc[1][3]] + [R.V(4) for _ in range(4)]
            for f4 in range(4):
                for c in range(3):
                    kv[f4][c] = pool[f4 * 3 + c]
        for dt in range(2):
            cvt_pk(a, Bv[dt], acc[2*sp_][2+dt], acc[2*sp_][2+dt] + 1)
            cvt_pk(a, Bv[dt] + 1, acc[2*sp_][2+dt] + 2, acc[2*sp_][2+dt] + 3)
            cvt_pk(a, Bv[dt] + 2, acc[2*sp_+1][2+dt], acc[2*sp_+1][2+dt] + 1)
            cvt_pk(a, Bv[dt] + 3, acc[2*sp_+1][2+dt] + 2, acc[2*sp_+1][2+dt] + 3)
        for f4 in range(4):
            cvt_pk(a, Af, T[0][f4], T[0][f4] + 1); cvt_pk(a, Af + 1, T[0][f4] + 2, T[0][f4] + 3)
            cvt_pk(a, Af + 2, T[1][f4], T[1][f4] + 1); cvt_pk(a, Af + 3, T[1][f4] + 2, T[1][f4] + 3)
            for c in range(3):
                B_ = Bv[c] if c < 2 else ones
                C_ = "0" if first else vr(kv[f4][c], 4)
                a(f"v_mfma_f32_16x16x32_bf16 {vr(kv[f4][c],4)}, {vr(Af,4)}, {vr(B_,4)}, {C_}")
        first = False
    tiles = [kv[t >> 1][t & 1] for t in range(8)] + [kv[f4][2] for f4 in range(4)]
    vA = vt[0]
    a(f"s_mul_i32 {sr(st[0])}, {sr(sW)}, {6*1024}")
    a(f"s_add_u32 {sr(st[0])}, {sr(st[0])}, {SCR}")
    a(f"v_lshlrev_b32 {vr(vA)}, 4, {vr(vLane)}")
    a(f"v_add_u32 {vr(vt[1])}, {sr(st[0])}, {vr(vA)}")
    a(f"s_xor_b32 {sr(st[1])}, {sr(sW)}, 2")
    a(f"s_mul_i32 {sr(st[1])}, {sr(st[1])}, {6*1024}")
    a(f"s_add_u32 {sr(st[1])}, {sr(st[1])}, {SCR}")
    a(f"v_add_u32 {vr(vt[2])}, {sr(st[1])}, {vr(vA)}")
    Lw1 = uid("Lx1"); Lw2 = uid("Lx2")
    a(f"s_cmp_eq_u32 {sr(sWm)}, 0")
    a(f"s_cbranch_scc0 {Lw1}")
    for i in range(6): a(f"ds_write_b128 {vr(vt[1])}, {vr(tiles[6+i],4)} offset:{i*1024}")
    a(f"s_branch {Lw2}")
    a.label(Lw1)
    for i in range(6): a(f"ds_write_b128 {vr(vt[1])}, {vr(tiles[i],4)} offset:{i*1024}")
    for i in range(6):
        for k in range(4): a(f"v_mov_b32 {vr(tiles[i]+k)}, {vr(tiles[6+i]+k)}")
    a.label(Lw2)
    a("s_waitcnt lgkmcnt(0)")
    stamp(a, 4)
    a("s_barrier")
    for i in range(6): a(f"ds_read_b128 {vr(tiles[6+i],4)}, {vr(vt[2])} offset:{i*1024}")
    sk = srd(a, R, P_WS, WS_KVP, 3 << 20)
    a(f"s_lshl_b32 {sr(st[0])}, {sr(sRB)}, 5")
    a(f"s_add_u32 {sr(st[0])}, {sr(st[0])}, {sr(sHead)}")
    a(f"s_mul_i32 {sr(st[0])}, {sr(st[0])}, 12")
    a(f"s_mul_i32 {sr(st[1])}, {sr(sWm)}, 6")
    a(f"s_add_u32 {sr(st[0])}, {sr(st[0])}, {sr(st[1])}")
    a(f"s_lshl_b32 {sr(st[0])}, {sr(st[0])}, 10")
    a(f"v_add_u32 {vr(vt[1])}, {sr(st[0])}, {vr(vA)}")
    for i in range(6):
        a(f"s_waitcnt lgkmcnt({5-i})")
        for k in range(4): a(f"v_add_f32 {vr(tiles[i]+k)}, {vr(tiles[i]+k)}, {vr(tiles[6+i]+k)}")
        a(f"s_mov_b32 {sr(st[2])}, {i*1024}")
        a(f"buffer_store_dwordx4 {vr(tiles[i],4)}, {vr(vt[1])}, {sr(sk,4)}, {sr(st[2])} offen sc1")
    a("s_waitcnt vmcnt(0)")
    a("s_barrier")
    if mega:
        Ls = uid("Lsig")
        a(f"s_cmp_eq_u32 {sr(sW)}, 0")
        a(f"s_cbranch_scc0 {Ls}")
        signal(a, R, S1A)
        a.label(Ls)
    R.release(m0)

def x_pieces(a, R, g, p_x, ld, sRow0, vt, st, sK, off=0, size=None):
    sx = srd(a, R, p_x, off, size)
    vP = vt[3]
    lanepat_rows(a, vP, vt, vLane, sLW, ld, st)
    pcs = []
    for t in range(g.nA):
        v = R.V()
        a(f"s_add_u32 {sr(st[0])}, {sr(sRow0)}, {32*t}")
        a(f"s_mul_i32 {sr(st[0])}, {sr(st[0])}, {ld}")
        a(f"v_add_u32 {vr(v)}, {sr(st[0])}, {vr(vP)}")
        pcs.append((v, sx, sK, t * 4096))
    return pcs

def loader_common(a, R, g):
    sKA, sKB, sLdW, sLdEnd, sTmp, sCnt = [R.S() for _ in range(6)]
    a(f"s_lshl_b32 {sr(sLdW)}, {sr(sLW)}, 10")
    if g.ring: a(f"s_add_u32 {sr(sLdW)}, {sr(sLdW)}, {g.ring}")
    a(f"s_add_u32 {sr(sLdEnd)}, {sr(sLdW)}, {g.STAGE*g.NST}")
    return sKA, sKB, sLdW, sLdEnd, sTmp, sCnt

def adv_simple(a, g, sKA, sKB, kA, kB):
    def f():
        a(f"s_add_u32 {sr(sKA)}, {sr(sKA)}, {kA}")
        a(f"s_add_u32 {sr(sKB)}, {sr(sKB)}, {kB}")
        a(f"s_cmp_ge_u32 {sr(sKA)}, {kA*g.S}")
        a(f"s_cselect_b32 {sr(sKA)}, 0, {sr(sKA)}")
        a(f"s_cselect_b32 {sr(sKB)}, 0, {sr(sKB)}")
    return f

def A1_loader(a, R, mega):
    g = GA1
    m0 = R.mark()
    vt, st = temps(R)
    sKA, sKB, sLdW, sLdEnd, sTmp, sCnt = loader_common(a, R, g)
    sRow = R.S()
    a(f"s_lshl_b32 {sr(sRow)}, {sr(sRB)}, 8")
    a(f"s_lshl_b32 {sr(sKA)}, {sr(sRot)}, 7")
    a(f"s_mul_i32 {sr(sKB)}, {sr(sRot)}, {64*6144}")
    pcs = x_pieces(a, R, g, P_AX, 2048, sRow, vt, st, sKA)
    sw = srd(a, R, P_WQKV)
    vP = vt[3]
    lanepat_kn(a, vP, vt, vLane, sLW, 6144, st, split=2048)
    for t in range(g.nB):
        v = R.V()
        u = t >> 1
        a(f"s_lshl_b32 {sr(st[0])}, {sr(sCB)}, 7")
        a(f"s_add_u32 {sr(st[0])}, {sr(st[0])}, {(1024 + u*32)*2 + 32*(t&1)*6144}")
        a(f"v_add_u32 {vr(v)}, {sr(st[0])}, {vr(vP)}")
        pcs.append((v, sw, sKB, g.TM * 128 + t * 4096))
    loader_loop(a, g, pcs, adv_simple(a, g, sKA, sKB, 128, 64 * 6144), sLdW, sLdEnd, sTmp, sCnt)
    R.release(m0)

FLAGL = 150 * 1024
KVL = SCR
def A2_compute(a, R, mega):
    g = GA2
    m0 = R.mark()
    vt, st = temps(R)
    sRd, sCnt, sL, sHead = R.S(), R.S(), R.S(), R.S()
    a(f"s_mov_b32 {sr(sL)}, {LOG2E}")
    acc = [[R.V(4) for _ in range(4)] for _ in range(4)]
    a(f"s_lshl_b32 {sr(sHead)}, {sr(sCB)}, 1")
    wfr0 = wphi_frags(a, R, sHead, vt, st, acc[0][0])
    a(f"s_add_u32 {sr(sHead)}, {sr(sHead)}, 1")
    wfr1 = wphi_frags(a, R, sHead, vt, st, acc[0][0])
    wfr = [wfr0, wfr1]
    m1 = R.mark()
    rd = read_setup(a, g, R, sW, None, vLane, vt, st)
    compute_loop(a, g, R, rd, acc, lambda m, n: True, sRd, sCnt, pre_barrier=lambda: stamp(a, 5), post_barrier=lambda: stamp(a, 6))
    R.release(m1)
    stamp(a, 7)
    tmp = R.V(28, 4)
    ph = [[[R.V(4), R.V(4)] for _ in range(2)] for _ in range(4)]
    for stt in range(4):
        for hh in range(2):
            feature_map(a, acc[stt][2*hh], acc[stt][2*hh+1], wfr[hh], tmp, ph[stt][hh][0], ph[stt][hh][1], sL)
    stamp(a, 8)
    a("s_barrier")
    stamp(a, 9)
    kvf = [[R.V(4) for _ in range(6)] for _ in range(2)]
    a(f"v_lshlrev_b32 {vr(vt[0])}, 4, {vr(vLane)}")
    a(f"v_add_u32 {vr(vt[0])}, {KVL}, {vr(vt[0])}")
    for hh in range(2):
        for f in range(6):
            a(f"ds_read_b128 {vr(kvf[hh][f],4)}, {vr(vt[0])} offset:{(hh*6+f)*1024}")
    a(f"v_and_b32 {vr(vt[1])}, 15, {vr(vLane)}")
    a(f"v_lshlrev_b32 {vr(vt[1])}, 7, {vr(vt[1])}")
    a(f"v_lshrrev_b32 {vr(vt[2])}, 5, {vr(vLane)}")
    a(f"v_xor_b32 {vr(vt[2])}, {vr(vt[2])}, {vr(vLane)}")
    a(f"v_and_b32 {vr(vt[2])}, 7, {vr(vt[2])}")
    a(f"v_lshl_add_u32 {vr(vt[1])}, {vr(vt[2])}, 4, {vr(vt[1])}")
    a(f"v_bfe_u32 {vr(vt[2])}, {vr(vLane)}, 4, 1")
    a(f"v_lshl_add_u32 {vr(vt[1])}, {vr(vt[2])}, 3, {vr(vt[1])}")
    a(f"s_lshl_b32 {sr(st[0])}, {sr(sW)}, 13")
    a(f"v_add_u32 {vr(vt[1])}, {sr(st[0])}, {vr(vt[1])}")
    vst = [R.V() for _ in range(4)]
    for c in range(4):
        a(f"v_xor_b32 {vr(vst[c])}, {c*32}, {vr(vt[1])}")
    a(f"s_mov_b32 {sr(st[1])}, 0x358637bd")
    a("s_waitcnt lgkmcnt(0)")
    N = tmp; D = tmp + 8; Q = tmp + 12
    for stt in range(4):
        for hh in range(2):
            p = ph[stt][hh]
            for dt in range(2):
                a(f"v_mfma_f32_16x16x32_bf16 {vr(N+4*dt,4)}, {vr(kvf[hh][dt],4)}, {vr(p[0],4)}, 0")
                a(f"v_mfma_f32_16x16x32_bf16 {vr(N+4*dt,4)}, {vr(kvf[hh][2+dt],4)}, {vr(p[1],4)}, {vr(N+4*dt,4)}")
            a(f"v_mfma_f32_16x16x32_bf16 {vr(D,4)}, {vr(kvf[hh][4],4)}, {vr(p[0],4)}, 0")
            a(f"v_mfma_f32_16x16x32_bf16 {vr(D,4)}, {vr(kvf[hh][5],4)}, {vr(p[1],4)}, {vr(D,4)}")
            cvt_pk(a, Q, D, D)
            a(f"v_and_b32 {vr(Q)}, 0xffff0000, {vr(Q)}")
            a(f"v_add_f32 {vr(Q)}, {sr(st[1])}, {vr(Q)}")
            cvt_pk(a, Q, Q, Q)
            a(f"v_and_b32 {vr(Q)}, 0xffff0000, {vr(Q)}")
            a(f"v_rcp_f32 {vr(Q)}, {vr(Q)}")
            for i in range(4):
                cvt_pk(a, Q + 4 + i, N + 2 * i, N + 2 * i + 1)
            for i in range(4):
                a(f"v_lshlrev_b32 {vr(N+2*i)}, 16, {vr(Q+4+i)}")
                a(f"v_and_b32 {vr(N+2*i+1)}, 0xffff0000, {vr(Q+4+i)}")
            for i in range(8):
                a(f"v_mul_f32 {vr(N+i)}, {vr(N+i)}, {vr(Q)}")
            for i in range(4):
                cvt_pk(a, Q + 4 + i, N + 2 * i, N + 2 * i + 1)
            for dt in range(2):
                a(f"ds_write_b64 {vr(vst[hh*2+dt])}, {vr(Q+4+2*dt,2)} offset:{stt*2048}")
    so = srd(a, R, P_WS, WS_O, 4 << 20)
    a(f"v_lshrrev_b32 {vr(vt[0])}, 3, {vr(vLane)}")
    a(f"v_xor_b32 {vr(vt[2])}, {vr(vt[0])}, {vr(vLane)}")
    a(f"v_and_b32 {vr(vt[2])}, 7, {vr(vt[2])}")
    a(f"v_lshlrev_b32 {vr(vt[1])}, 7, {vr(vt[0])}")
    a(f"v_lshl_add_u32 {vr(vt[1])}, {vr(vt[2])}, 4, {vr(vt[1])}")
    a(f"v_add_u32 {vr(vt[1])}, {sr(st[0])}, {vr(vt[1])}")
    a(f"v_lshlrev_b32 {vr(vt[2])}, 11, {vr(vt[0])}")
    a(f"v_and_b32 {vr(vt[3])}, 7, {vr(vLane)}")
    a(f"v_lshl_add_u32 {vr(vt[2])}, {vr(vt[3])}, 4, {vr(vt[2])}")
    a(f"s_lshl_b32 {sr(st[2])}, {sr(sRB)}, 2")
    a(f"s_add_u32 {sr(st[2])}, {sr(st[2])}, {sr(sW)}")
    a(f"s_lshl_b32 {sr(st[2])}, {sr(st[2])}, 17")
    a(f"s_lshl_b32 {sr(st[3])}, {sr(sCB)}, 7")
    a(f"s_add_u32 {sr(st[2])}, {sr(st[2])}, {sr(st[3])}")
    a(f"v_add_u32 {vr(vt[2])}, {sr(st[2])}, {vr(vt[2])}")
    a("s_waitcnt lgkmcnt(0)")
    buf = [acc[i >> 2][i & 3] for i in range(8)]
    for i in range(8):
        a(f"ds_read_b128 {vr(buf[i],4)}, {vr(vt[1])} offset:{i*1024}")
    for i in range(8):
        a(f"s_waitcnt lgkmcnt({7-i})")
        a(f"s_mov_b32 {sr(st[3])}, {i*8*2048}")
        a(f"buffer_store_dwordx4 {vr(buf[i],4)}, {vr(vt[2])}, {sr(so,4)}, {sr(st[3])} offen sc1")
    a("s_waitcnt vmcnt(0)")
    stamp(a, 10)
    a("s_barrier")
    if mega:
        Ls = uid("Lsig")
        a(f"s_cmp_eq_u32 {sr(sW)}, 0")
        a(f"s_cbranch_scc0 {Ls}")
        signal(a, R, S2A)
        a.label(Ls)
    R.release(m0)

def A2_loader(a, R, mega, nbar_before):
    g = GA2
    m0 = R.mark()
    vt, st = temps(R)
    m1 = R.mark()
    sKA, sKB, sLdW, sLdEnd, sTmp, sCnt = loader_common(a, R, g)
    sRow = R.S()
    a(f"s_lshl_b32 {sr(sRow)}, {sr(sRB)}, 8")
    a(f"s_lshl_b32 {sr(sKA)}, {sr(sRot)}, 7")
    a(f"s_mul_i32 {sr(sKB)}, {sr(sRot)}, {64*6144}")
    pcs = x_pieces(a, R, g, P_AX, 2048, sRow, vt, st, sKA)
    sw = srd(a, R, P_WQKV)
    vP = vt[3]
    lanepat_kn(a, vP, vt, vLane, sLW, 6144, st)
    for t in range(g.nB):
        v = R.V()
        a(f"s_lshl_b32 {sr(st[0])}, {sr(sCB)}, 7")
        a(f"s_add_u32 {sr(st[0])}, {sr(st[0])}, {32*(t&1)*6144}")
        a(f"v_add_u32 {vr(v)}, {sr(st[0])}, {vr(vP)}")
        pcs.append((v, sw, sKB, g.TM * 128 + t * 4096))
    def extra():
        if mega:
            a(f"v_mov_b32 {vr(vt[0])}, {FLAGL}")
            a(f"v_mov_b32 {vr(vt[1])}, 0")
            a(f"ds_write_b32 {vr(vt[0])}, {vr(vt[1])}")
            a("s_waitcnt lgkmcnt(0)")
        for _ in range(nbar_before): a("s_barrier")
        if mega: nonce_fetch(a, R)
    loader_loop(a, g, pcs, adv_simple(a, g, sKA, sKB, 128, 64 * 6144), sLdW, sLdEnd, sTmp, sCnt, after_prologue=extra)
    R.release(m1)
    if mega:
        Lq = uid("Lq"); Lq2 = uid("Lq2")
        a(f"v_mov_b32 {vr(vt[0])}, {FLAGL}")
        a(f"s_cmp_eq_u32 {sr(sLW)}, 0")
        a(f"s_cbranch_scc0 {Lq}")
        poll(a, R, S1A)
        a(f"v_mov_b32 {vr(vt[1])}, 1")
        a(f"ds_write_b32 {vr(vt[0])}, {vr(vt[1])}")
        a(f"s_branch {Lq2}")
        a.label(Lq)
        a(f"ds_read_b32 {vr(vt[1])}, {vr(vt[0])}")
        a("s_waitcnt lgkmcnt(0)")
        a(f"v_readfirstlane_b32 {sr(st[0])}, {vr(vt[1])}")
        a(f"s_cmp_eq_u32 {sr(st[0])}, 1")
        a(f"s_cbranch_scc1 {Lq2}")
        a("s_sleep 1")
        a(f"s_branch {Lq}")
        a.label(Lq2)
    sk = srd(a, R, P_WS, WS_KVP, 3 << 20)
    buf = [[R.V(4) for _ in range(8)] for _ in range(6)]
    a(f"s_mul_i32 {sr(st[0])}, {sr(sCB)}, 24")
    a(f"s_mul_i32 {sr(st[1])}, {sr(sLW)}, 6")
    a(f"s_add_u32 {sr(st[0])}, {sr(st[0])}, {sr(st[1])}")
    a(f"s_lshl_b32 {sr(st[0])}, {sr(st[0])}, 10")
    a(f"v_lshlrev_b32 {vr(vt[0])}, 4, {vr(vLane)}")
    a(f"v_add_u32 {vr(vt[1])}, {sr(st[0])}, {vr(vt[0])}")
    for i in range(6):
        for r in range(8):
            a(f"s_mov_b32 {sr(st[2])}, {r*32*12*1024 + i*1024}")
            a(f"buffer_load_dwordx4 {vr(buf[i][r],4)}, {vr(vt[1])}, {sr(sk,4)}, {sr(st[2])} offen sc1")
    def dest(t):
        if t < 8: return ((t >> 2) * 2 + (t & 1)) * 1024 + ((t >> 1) & 1) * 8
        f4 = t - 8
        return (4 + (f4 >> 1)) * 1024 + (f4 & 1) * 8
    a(f"s_lshr_b32 {sr(st[0])}, {sr(sLW)}, 1")
    a(f"s_mul_i32 {sr(st[0])}, {sr(st[0])}, {6*1024}")
    a(f"s_add_u32 {sr(st[0])}, {sr(st[0])}, {KVL}")
    a(f"v_add_u32 {vr(vt[0])}, {sr(st[0])}, {vr(vt[0])}")
    for i in range(6):
        a(f"s_waitcnt vmcnt({(5-i)*8})")
        b = buf[i]
        for k in range(4):
            a(f"v_add_f32 {vr(b[0]+k)}, {vr(b[0]+k)}, {vr(b[1]+k)}")
            a(f"v_add_f32 {vr(b[2]+k)}, {vr(b[2]+k)}, {vr(b[3]+k)}")
            a(f"v_add_f32 {vr(b[4]+k)}, {vr(b[4]+k)}, {vr(b[5]+k)}")
            a(f"v_add_f32 {vr(b[6]+k)}, {vr(b[6]+k)}, {vr(b[7]+k)}")
        for k in range(4):
            a(f"v_add_f32 {vr(b[0]+k)}, {vr(b[0]+k)}, {vr(b[2]+k)}")
            a(f"v_add_f32 {vr(b[4]+k)}, {vr(b[4]+k)}, {vr(b[6]+k)}")
        for k in range(4):
            a(f"v_add_f32 {vr(b[0]+k)}, {vr(b[0]+k)}, {vr(b[4]+k)}")
        cvt_pk(a, b[1], b[0], b[0] + 1); cvt_pk(a, b[1] + 1, b[0] + 2, b[0] + 3)
    Lo = uid("Lg1"); Le = uid("Lg2")
    a(f"s_bitcmp1_b32 {sr(sLW)}, 0")
    a(f"s_cbranch_scc1 {Lo}")
    for i in range(6): a(f"ds_write_b64 {vr(vt[0])}, {vr(buf[i][1],2)} offset:{dest(i)}")
    a(f"s_branch {Le}")
    a.label(Lo)
    for i in range(6): a(f"ds_write_b64 {vr(vt[0])}, {vr(buf[i][1],2)} offset:{dest(6+i)}")
    a.label(Le)
    a("s_waitcnt lgkmcnt(0)")
    a("s_barrier")
    R.release(m0)
    if mega: prefetch_w3(a, R, False)
    a("s_barrier")
    a("s_waitcnt vmcnt(0)")
    R.release(m0)

def prefetch_w3(a, R, chainB):
    vo = R.V(); vd = [R.V(4) for _ in range(4)]
    if not PFW: return
    m = R.mark()
    s0, s1 = R.S(), R.S()
    a(f"s_and_b32 {sr(s0)}, {sr(sRB)}, 3")
    a(f"s_lshl_b32 {sr(s0)}, {sr(s0)}, 1")
    a(f"s_and_b32 {sr(s1)}, {sr(sCB)}, 1")
    a(f"s_add_u32 {sr(s0)}, {sr(s0)}, {sr(s1)}")
    a(f"s_lshl_b32 {sr(s0)}, {sr(s0)}, 2")
    a(f"s_add_u32 {sr(s0)}, {sr(s0)}, {sr(sLW)}")
    a(f"s_lshr_b32 {sr(s1)}, {sr(sCB)}, 1")
    if chainB:
        a(f"s_lshl_b32 {sr(s1)}, {sr(s1)}, 18")
        a(f"s_lshl_b32 {sr(s0)}, {sr(s0)}, 13")
        a(f"s_add_u32 {sr(s0)}, {sr(s0)}, {sr(s1)}")
        a(f"v_lshlrev_b32 {vr(vo)}, 4, {vr(vLane)}")
        for p in (P_CRE, P_CIM):
            sd = srd(a, R, p)
            for i in range(8):
                if i == 4: a(f"s_add_u32 {sr(s1)}, {sr(s0)}, 4096")
                a(f"buffer_load_dwordx4 {vr(vd[i&3],4)}, {vr(vo)}, {sr(sd,4)}, {sr(s0 if i < 4 else s1)} offen offset:{(i&3)*1024}")
    else:
        a(f"s_lshl_b32 {sr(s1)}, {sr(s1)}, 8")
        a(f"s_lshl_b32 {sr(s0)}, {sr(s0)}, 16")
        a(f"s_add_u32 {sr(s0)}, {sr(s0)}, {sr(s1)}")
        a(f"v_lshrrev_b32 {vr(vo)}, 4, {vr(vLane)}")
        a(f"v_lshlrev_b32 {vr(vo)}, 11, {vr(vo)}")
        a(f"v_and_b32 {vr(vd[0])}, 15, {vr(vLane)}")
        a(f"v_lshl_add_u32 {vr(vo)}, {vr(vd[0])}, 4, {vr(vo)}")
        sd = srd(a, R, P_WO)
        for i in range(8):
            a(f"s_add_u32 {sr(s1)}, {sr(s0)}, {i*8192}")
            a(f"buffer_load_dwordx4 {vr(vd[i&3],4)}, {vr(vo)}, {sr(sd,4)}, {sr(s1)} offen")
    R.release(m)

def P3_compute(a, R, chainB):
    g = GB3 if chainB else GA3
    m0 = R.mark()
    vt, st = temps(R)
    sRd, sCnt = R.S(), R.S()
    a(f"s_lshr_b32 {sr(sWm)}, {sr(sW)}, 1")
    a(f"s_and_b32 {sr(sWn)}, {sr(sW)}, 1")
    acc = [[R.V(4) for _ in range(4)] for _ in range(4)]
    sRow, sCol = R.S(), R.S()
    a(f"s_lshl_b32 {sr(sRow)}, {sr(sRB)}, 8")
    a(f"s_and_b32 {sr(st[0])}, {sr(sCB)}, 1")
    a(f"s_lshl_b32 {sr(st[0])}, {sr(st[0])}, 7")
    a(f"s_add_u32 {sr(sRow)}, {sr(sRow)}, {sr(st[0])}")
    a(f"s_lshl_b32 {sr(st[0])}, {sr(sWm)}, 6")
    a(f"s_add_u32 {sr(sRow)}, {sr(sRow)}, {sr(st[0])}")
    a(f"s_lshr_b32 {sr(sCol)}, {sr(sCB)}, 1")
    a(f"s_lshl_b32 {sr(sCol)}, {sr(sCol)}, 7")
    a(f"s_lshl_b32 {sr(st[0])}, {sr(sWn)}, 6")
    a(f"s_add_u32 {sr(sCol)}, {sr(sCol)}, {sr(st[0])}")
    vRow, vCol = R.V(), R.V()
    a(f"v_and_b32 {vr(vRow)}, 15, {vr(vLane)}")
    a(f"v_add_u32 {vr(vRow)}, {sr(sRow)}, {vr(vRow)}")
    a(f"v_lshrrev_b32 {vr(vCol)}, 4, {vr(vLane)}")
    a(f"v_lshlrev_b32 {vr(vCol)}, 2, {vr(vCol)}")
    a(f"v_add_u32 {vr(vCol)}, {sr(sCol)}, {vr(vCol)}")
    if chainB:
        xs = [[R.V(2) for _ in range(4)] for _ in range(4)]
        dk = [R.V(2) for _ in range(4)]
        mm = R.mark()
        sx = srd(a, R, P_BX); sdk = srd(a, R, P_DSK)
        a(f"v_lshlrev_b32 {vr(vt[0])}, 11, {vr(vRow)}")
        a(f"v_lshl_add_u32 {vr(vt[0])}, {vr(vCol)}, 1, {vr(vt[0])}")
        a(f"v_lshlrev_b32 {vr(vt[1])}, 1, {vr(vCol)}")
        for m in range(4):
            a(f"s_mov_b32 {sr(st[0])}, {m*16*2048}")
            for n in range(4):
                a(f"buffer_load_dwordx2 {vr(xs[m][n],2)}, {vr(vt[0])}, {sr(sx,4)}, {sr(st[0])} offen offset:{n*32}")
        for n in range(4):
            a(f"buffer_load_dwordx2 {vr(dk[n],2)}, {vr(vt[1])}, {sr(sdk,4)}, 0 offen offset:{n*32}")
        R.release(mm)
    m1 = R.mark()
    rd = read_setup(a, g, R, sWm, sWn, vLane, vt, st)
    if MEGA[0]: a("s_barrier")
    compute_loop(a, g, R, rd, acc, lambda m, n: True, sRd, sCnt, pre_barrier=lambda: stamp(a, 11), post_barrier=lambda: stamp(a, 12))
    R.release(m1)
    stamp(a, 13)
    so = srd(a, R, P_OUT)
    a(f"v_lshlrev_b32 {vr(vt[0])}, 13, {vr(vRow)}")
    a(f"v_lshl_add_u32 {vr(vt[0])}, {vr(vCol)}, 2, {vr(vt[0])}")
    if chainB:
        a(f"v_add_u32 {vr(vt[0])}, 4096, {vr(vt[0])}")
        a("s_waitcnt vmcnt(0)")
        t8 = R.V(8, 4)
        dkf = [R.V(4) for _ in range(4)]
        for n in range(4):
            for i in range(2):
                a(f"v_lshlrev_b32 {vr(dkf[n]+2*i)}, 16, {vr(dk[n]+i)}")
                a(f"v_and_b32 {vr(dkf[n]+2*i+1)}, 0xffff0000, {vr(dk[n]+i)}")
    for m in range(4):
        a(f"s_mov_b32 {sr(st[0])}, {m*16*8192}")
        for n in range(4):
            A_ = acc[m][n]
            if chainB:
                for i in range(2):
                    a(f"v_lshlrev_b32 {vr(t8+2*i)}, 16, {vr(xs[m][n]+i)}")
                    a(f"v_and_b32 {vr(t8+2*i+1)}, 0xffff0000, {vr(xs[m][n]+i)}")
                for i in range(4):
                    a(f"v_mul_f32 {vr(t8+i)}, {vr(t8+i)}, {vr(dkf[n]+i)}")
                cvt_pk(a, t8 + 4, t8, t8 + 1); cvt_pk(a, t8 + 5, t8 + 2, t8 + 3)
                for i in range(2):
                    a(f"v_lshlrev_b32 {vr(t8+2*i)}, 16, {vr(t8+4+i)}")
                    a(f"v_and_b32 {vr(t8+2*i+1)}, 0xffff0000, {vr(t8+4+i)}")
                for i in range(4):
                    a(f"v_add_f32 {vr(A_+i)}, {vr(A_+i)}, {vr(t8+i)}")
            else:
                cvt_pk(a, vt[1], A_, A_ + 1); cvt_pk(a, vt[2], A_ + 2, A_ + 3)
                a(f"v_lshlrev_b32 {vr(A_)}, 16, {vr(vt[1])}")
                a(f"v_and_b32 {vr(A_+1)}, 0xffff0000, {vr(vt[1])}")
                a(f"v_lshlrev_b32 {vr(A_+2)}, 16, {vr(vt[2])}")
                a(f"v_and_b32 {vr(A_+3)}, 0xffff0000, {vr(vt[2])}")
            a(f"buffer_store_dwordx4 {vr(A_,4)}, {vr(vt[0])}, {sr(so,4)}, {sr(st[0])} offen offset:{n*64}")
    R.release(m0)

def P3_loader(a, R, chainB, mega):
    g = GB3 if chainB else GA3
    m0 = R.mark()
    vt, st = temps(R)
    sKA, sKB, sLdW, sLdEnd, sTmp, sCnt = loader_common(a, R, g)
    sRow = R.S()
    a(f"s_lshl_b32 {sr(sRow)}, {sr(sRB)}, 8")
    a(f"s_and_b32 {sr(st[0])}, {sr(sCB)}, 1")
    a(f"s_lshl_b32 {sr(st[0])}, {sr(st[0])}, 7")
    a(f"s_add_u32 {sr(sRow)}, {sr(sRow)}, {sr(st[0])}")
    vP = vt[3]
    sR3 = R.S()
    if ROT3 == 1: a(f"s_mov_b32 {sr(sR3)}, {sr(sRot)}")
    elif ROT3 == 0: a(f"s_and_b32 {sr(sR3)}, s2, 3\ns_lshl_b32 {sr(sR3)}, {sr(sR3)}, 2")
    elif ROT3 == 2: a(f"s_and_b32 {sr(sR3)}, {sr(sRot)}, 1\ns_lshl_b32 {sr(sR3)}, {sr(sR3)}, 3\ns_and_b32 {sr(st[0])}, s2, 3\ns_lshl_b32 {sr(st[0])}, {sr(st[0])}, 1\ns_add_u32 {sr(sR3)}, {sr(sR3)}, {sr(st[0])}")
    elif ROT3 == 3: a(f"s_and_b32 {sr(sR3)}, {sr(sRot)}, 3\ns_lshl_b32 {sr(sR3)}, {sr(sR3)}, 2\ns_and_b32 {sr(st[0])}, s2, 3\ns_add_u32 {sr(sR3)}, {sr(sR3)}, {sr(st[0])}")
    if not chainB:
        a(f"s_lshl_b32 {sr(sKA)}, {sr(sR3)}, 7")
        a(f"s_lshl_b32 {sr(sKB)}, {sr(sR3)}, 17")
        pcs = x_pieces(a, R, g, P_WS, 2048, sRow, vt, st, sKA, off=WS_O, size=4 << 20)
        sw = srd(a, R, P_WO)
        lanepat_kn(a, vP, vt, vLane, sLW, 2048, st)
        for t in range(g.nB):
            v = R.V()
            a(f"s_lshr_b32 {sr(st[0])}, {sr(sCB)}, 1")
            a(f"s_lshl_b32 {sr(st[0])}, {sr(st[0])}, 8")
            a(f"s_add_u32 {sr(st[0])}, {sr(st[0])}, {(t>>1)*128 + 32*(t&1)*2048}")
            a(f"v_add_u32 {vr(v)}, {sr(st[0])}, {vr(vP)}")
            pcs.append((v, sw, sKB, g.TM * 128 + t * 4096))
        adv = adv_simple(a, g, sKA, sKB, 128, 64 * 2048)
    else:
        a(f"s_lshl_b32 {sr(sKA)}, {sr(sR3)}, 8")
        pcs = x_pieces(a, R, g, P_WS, 4096, sRow, vt, st, sKA, off=WS_H, size=8 << 20)
        sw = srd(a, R, P_CRE)
        lanepat_rows(a, vP, vt, vLane, sLW, 2048, st)
        for t in range(g.nB):
            v = R.V()
            a(f"s_lshr_b32 {sr(st[0])}, {sr(sCB)}, 1")
            a(f"s_lshl_b32 {sr(st[0])}, {sr(st[0])}, 7")
            a(f"s_add_u32 {sr(st[0])}, {sr(st[0])}, {32*t}")
            a(f"s_lshl_b32 {sr(st[0])}, {sr(st[0])}, 11")
            a(f"v_add_u32 {vr(v)}, {sr(st[0])}, {vr(vP)}")
            pcs.append((v, sw, sKB, g.TM * 128 + t * 4096))
        def setB():
            a(f"s_and_b32 {sr(sKB)}, {sr(sKA)}, 2047")
            a(f"s_cmp_lt_u32 {sr(sKA)}, 2048")
            a(f"s_cselect_b32 {sr(sw)}, {sr(sptr(P_CRE))}, {sr(sptr(P_CIM))}")
            a(f"s_cselect_b32 {sr(sw+1)}, {sr(sptr(P_CRE)+1)}, {sr(sptr(P_CIM)+1)}")
        setB()
        def adv():
            a(f"s_add_u32 {sr(sKA)}, {sr(sKA)}, 128")
            a(f"s_and_b32 {sr(sKA)}, {sr(sKA)}, 4095")
            setB()
    if mega:
        Lq = uid("Lq")
        a(f"s_cmp_eq_u32 {sr(sLW)}, 0")
        a(f"s_cbranch_scc0 {Lq}")
        a("buffer_inv sc1")
        poll(a, R, S2B if chainB else S2A)
        a.label(Lq)
        a("s_barrier")
    loader_loop(a, g, pcs, adv, sLdW, sLdEnd, sTmp, sCnt)
    R.release(m0)

WREG = 34816
EXO = 4 * WREG

def pk(op, d, x, y, z=None, neg=None):
    ops = f"{vr(d,2)}, {vr(x,2)}, {vr(y,2)}" + (f", {vr(z,2)}" if z is not None else "")
    m = ""
    if neg is not None:
        bits = ["0"] * (3 if z is not None else 2); bits[neg] = "1"
        m = f" neg_lo:[{','.join(bits)}] neg_hi:[{','.join(bits)}]"
    return f"v_pk_{op}_f32 {ops}{m}"

def cmul(a, dr, di, ar, ai, br, bi, t):
    for h in (0, 2):
        a(pk("mul", t + h, ai + h, bi + h))
        a(pk("mul", t + 4 + h, ai + h, br + h))
    for h in (0, 2):
        a(pk("fma", t + h, ar + h, br + h, t + h, neg=2))
        a(pk("fma", t + 4 + h, ar + h, bi + h, t + 4 + h))
    for i in range(4):
        a(f"v_mov_b32 {vr(dr+i)}, {vr(t+i)}")
        a(f"v_mov_b32 {vr(di+i)}, {vr(t+4+i)}")

def cmac_step(a, nr, ni, lr, li, ur, ui, wr, wi):
    for h in (0, 2):
        a(pk("fma", nr + h, lr + h, ur + h, wr + h))
        a(pk("fma", ni + h, lr + h, ui + h, wi + h))
    for h in (0, 2):
        a(pk("fma", nr + h, li + h, ui + h, nr + h, neg=0))
        a(pk("fma", ni + h, li + h, ur + h, ni + h))

def B1_compute(a, R, mega):
    g = GB1
    m0 = R.mark()
    vt, st = temps(R)
    sRd, sCnt = R.S(), R.S()
    a(f"s_lshr_b32 {sr(sWm)}, {sr(sW)}, 1")
    a(f"s_and_b32 {sr(sWn)}, {sr(sW)}, 1")
    acc = [[R.V(4) for _ in range(4)] for _ in range(8)]
    Q = lambda: R.V(4)
    lr, li, kr, ki, l16r, l16i, l256r, l256i, pwr, pwi = [Q() for _ in range(10)]
    T = acc[0][0]
    raw = T; lre = T + 8; lim = T + 12; dt = T + 16; x0 = T + 20; x1 = T + 24; x2 = T + 28; x3 = T + 32; t8 = T + 40; qr = T + 48; qi = T + 52
    mm = R.mark()
    s1 = srd(a, R, P_LRE); s2 = srd(a, R, P_LIM); s3 = srd(a, R, P_LDT)
    a(f"v_and_b32 {vr(vt[0])}, 7, {vr(vLane)}")
    a(f"v_lshlrev_b32 {vr(vt[0])}, 3, {vr(vt[0])}")
    a(f"s_lshl_b32 {sr(st[0])}, {sr(sCB)}, 7")
    a(f"s_lshl_b32 {sr(st[1])}, {sr(sWn)}, 6")
    a(f"s_add_u32 {sr(st[0])}, {sr(st[0])}, {sr(st[1])}")
    a(f"buffer_load_dwordx2 {vr(raw,2)}, {vr(vt[0])}, {sr(s1,4)}, {sr(st[0])} offen")
    a(f"buffer_load_dwordx2 {vr(raw+2,2)}, {vr(vt[0])}, {sr(s2,4)}, {sr(st[0])} offen")
    a(f"buffer_load_dwordx2 {vr(raw+4,2)}, {vr(vt[0])}, {sr(s3,4)}, {sr(st[0])} offen")
    R.release(mm)
    a(f"s_mov_b32 {sr(st[2])}, {LOG2E}")
    a(f"s_mov_b32 {sr(st[3])}, 0x3e22f983")
    a("s_waitcnt vmcnt(0)")
    for (dst, src) in ((lre, raw), (lim, raw + 2), (dt, raw + 4)):
        for i in range(2):
            a(f"v_lshlrev_b32 {vr(dst+2*i)}, 16, {vr(src+i)}")
            a(f"v_and_b32 {vr(dst+2*i+1)}, 0xffff0000, {vr(src+i)}")
    for i in range(4): a(f"v_mul_f32 {vr(dt+i)}, {sr(st[2])}, {vr(dt+i)}")
    for i in range(4): a(f"v_exp_f32 {vr(dt+i)}, {vr(dt+i)}")
    cvt_pk(a, raw, dt, dt + 1); cvt_pk(a, raw + 1, dt + 2, dt + 3)
    for i in range(2):
        a(f"v_lshlrev_b32 {vr(dt+2*i)}, 16, {vr(raw+i)}")
        a(f"v_and_b32 {vr(dt+2*i+1)}, 0xffff0000, {vr(raw+i)}")
    for i in range(4):
        a(f"v_mul_f32 {vr(x0+i)}, {vr(dt+i)}, {vr(lre+i)}")
        a(f"v_mul_f32 {vr(x1+i)}, {vr(dt+i)}, {vr(lim+i)}")
    for i in range(4):
        a(f"v_mul_f32 {vr(x0+i)}, {sr(st[2])}, {vr(x0+i)}")
        a(f"v_mul_f32 {vr(x1+i)}, {sr(st[3])}, {vr(x1+i)}")
    for i in range(4):
        a(f"v_exp_f32 {vr(x0+i)}, {vr(x0+i)}")
        a(f"v_fract_f32 {vr(x1+i)}, {vr(x1+i)}")
    for i in range(4):
        a(f"v_cos_f32 {vr(x2+i)}, {vr(x1+i)}")
        a(f"v_sin_f32 {vr(x3+i)}, {vr(x1+i)}")
    for i in range(4):
        a(f"v_mul_f32 {vr(lr+i)}, {vr(x0+i)}, {vr(x2+i)}")
        a(f"v_mul_f32 {vr(x3+i)}, {vr(x0+i)}, {vr(x3+i)}")
    for i in range(4):
        a(f"v_add_f32 {vr(x2+i)}, -1.0, {vr(lr+i)}")
        a(f"v_mul_f32 {vr(x0+i)}, {vr(lre+i)}, {vr(lre+i)}")
        a(f"v_xor_b32 {vr(li+i)}, 0x80000000, {vr(x3+i)}")
    for i in range(4):
        a(f"v_fma_f32 {vr(x0+i)}, {vr(lim+i)}, {vr(lim+i)}, {vr(x0+i)}")
        a(f"v_mul_f32 {vr(kr+i)}, {vr(x2+i)}, {vr(lre+i)}")
        a(f"v_mul_f32 {vr(ki+i)}, {vr(x3+i)}, {vr(lre+i)}")
    for i in range(4):
        a(f"v_rcp_f32 {vr(x0+i)}, {vr(x0+i)}")
        a(f"v_fma_f32 {vr(kr+i)}, {vr(x3+i)}, {vr(lim+i)}, {vr(kr+i)}")
        a(f"v_fma_f32 {vr(ki+i)}, -{vr(x2+i)}, {vr(lim+i)}, {vr(ki+i)}")
    for i in range(4):
        a(f"v_add_f32 {vr(x0+i)}, {vr(x0+i)}, {vr(x0+i)}")
    for i in range(4):
        a(f"v_mul_f32 {vr(kr+i)}, {vr(kr+i)}, {vr(x0+i)}")
        a(f"v_mul_f32 {vr(ki+i)}, {vr(ki+i)}, -{vr(x0+i)}")
    for i in range(4):
        a(f"v_mov_b32 {vr(qr+i)}, {vr(lr+i)}")
        a(f"v_mov_b32 {vr(qi+i)}, {vr(li+i)}")
        a(f"v_mov_b32 {vr(pwr+i)}, 1.0")
        a(f"v_mov_b32 {vr(pwi+i)}, 0")
    for k in range(4): cmul(a, qr, qi, qr, qi, qr, qi, t8)
    for i in range(4):
        a(f"v_mov_b32 {vr(l16r+i)}, {vr(qr+i)}")
        a(f"v_mov_b32 {vr(l16i+i)}, {vr(qi+i)}")
    a(f"v_lshrrev_b32 {vr(vt[1])}, 3, {vr(vLane)}")
    a(f"s_lshl_b32 {sr(st[0])}, {sr(sWm)}, 3")
    a(f"v_add_u32 {vr(vt[1])}, {sr(st[0])}, {vr(vt[1])}")
    vq16 = R.V()
    a(f"v_mov_b32 {vr(vq16)}, {vr(vt[1])}")
    for k in range(4):
        cmul(a, x0, x1, pwr, pwi, qr, qi, t8)
        a(f"v_and_b32 {vr(vt[2])}, {1<<k}, {vr(vq16)}")
        a(f"v_cmp_ne_u32 vcc, 0, {vr(vt[2])}")
        for i in range(4):
            a(f"v_cndmask_b32 {vr(pwr+i)}, {vr(pwr+i)}, {vr(x0+i)}, vcc")
            a(f"v_cndmask_b32 {vr(pwi+i)}, {vr(pwi+i)}, {vr(x1+i)}, vcc")
        cmul(a, qr, qi, qr, qi, qr, qi, t8)
    a(f"v_lshrrev_b32 {vr(vt[1])}, 3, {vr(vLane)}")
    a(f"s_sub_u32 {sr(st[0])}, {sr(sRB)}, 1")
    a(f"v_sub_u32 {vr(vt[1])}, {sr(st[0])}, {vr(vt[1])}")
    for i in range(4):
        a(f"v_mov_b32 {vr(l256r+i)}, 1.0")
        a(f"v_mov_b32 {vr(l256i+i)}, 0")
    for k in range(3):
        cmul(a, x0, x1, l256r, l256i, qr, qi, t8)
        a(f"v_and_b32 {vr(vt[2])}, {1<<k}, {vr(vt[1])}")
        a(f"v_cmp_ne_u32 vcc, 0, {vr(vt[2])}")
        for i in range(4):
            a(f"v_cndmask_b32 {vr(l256r+i)}, {vr(l256r+i)}, {vr(x0+i)}, vcc")
            a(f"v_cndmask_b32 {vr(l256i+i)}, {vr(l256i+i)}, {vr(x1+i)}, vcc")
        if k < 2: cmul(a, qr, qi, qr, qi, qr, qi, t8)
    a(f"v_cmp_gt_i32 vcc, 0, {vr(vt[1])}")
    for i in range(4):
        a(f"v_cndmask_b32 {vr(l256r+i)}, {vr(l256r+i)}, 0, vcc")
        a(f"v_cndmask_b32 {vr(l256i+i)}, {vr(l256i+i)}, 0, vcc")
    m1 = R.mark()
    rd = read_setup(a, g, R, sWm, sWn, vLane, vt, st)
    nonce_issue(a, R, vt)
    compute_loop(a, g, R, rd, acc, lambda m, n: True, sRd, sCnt, pre_barrier=lambda: stamp(a, 1), post_barrier=lambda: stamp(a, 2))
    nonce_finish(a, R, vt)
    R.release(m1)
    stamp(a, 3)
    sWB = R.S()
    a(f"s_mul_i32 {sr(sWB)}, {sr(sW)}, {WREG}")
    wa = [R.V(), R.V()]
    a(f"v_and_b32 {vr(vt[0])}, 15, {vr(vLane)}")
    a(f"v_lshlrev_b32 {vr(vt[0])}, 7, {vr(vt[0])}")
    a(f"v_lshrrev_b32 {vr(vt[1])}, 4, {vr(vLane)}")
    a(f"v_xor_b32 {vr(vt[1])}, {vr(vt[1])}, {vr(vLane)}")
    a(f"v_and_b32 {vr(vt[1])}, 7, {vr(vt[1])}")
    a(f"v_lshl_add_u32 {vr(vt[0])}, {vr(vt[1])}, 4, {vr(vt[0])}")
    a(f"v_add_u32 {vr(wa[0])}, {sr(sWB)}, {vr(vt[0])}")
    a(f"v_xor_b32 {vr(wa[1])}, 64, {vr(wa[0])}")
    for m in range(8):
        for n in range(4):
            a(f"ds_write_b128 {vr(wa[n&1])}, {vr(acc[m][n],4)} offset:{(n>>1)*17408 + m*2176}")
    ra = [R.V() for _ in range(8)]
    a(f"v_lshrrev_b32 {vr(vt[0])}, 3, {vr(vLane)}")
    a(f"v_mul_u32_u24 {vr(vt[0])}, 2176, {vr(vt[0])}")
    a(f"v_and_b32 {vr(vt[1])}, 7, {vr(vLane)}")
    a(f"v_lshl_add_u32 {vr(vt[0])}, {vr(vt[1])}, 4, {vr(vt[0])}")
    a(f"v_add_u32 {vr(vt[0])}, {sr(sWB)}, {vr(vt[0])}")
    for k in range(8): a(f"v_xor_b32 {vr(ra[k])}, {k*16}, {vr(vt[0])}")
    X = acc[0][0]
    Xr = lambda j: X + 8 * j
    Xi = lambda j: X + 8 * j + 4
    a("s_waitcnt lgkmcnt(0)")
    for j in range(16):
        a(f"ds_read_b128 {vr(Xr(j),4)}, {vr(ra[j&7])} offset:{j*128}")
        a(f"ds_read_b128 {vr(Xi(j),4)}, {vr(ra[j&7])} offset:{17408 + j*128}")
    tq = R.V(8, 4)
    u = [(Q(), Q()), (Q(), Q())]
    for j in range(16):
        if j < 8: a(f"s_waitcnt lgkmcnt({14 - 2*j})")
        elif j == 8: a("s_waitcnt lgkmcnt(0)")
        for h in (0, 2):
            a(pk("mul", tq + h, ki + h, Xr(j) + h))
            a(pk("mul", Xr(j) + h, kr + h, Xr(j) + h))
        for h in (0, 2):
            a(pk("fma", Xr(j) + h, ki + h, Xi(j) + h, Xr(j) + h))
            a(pk("fma", Xi(j) + h, kr + h, Xi(j) + h, tq + h, neg=0))
        if j == 0:
            cur = (Xr(0), Xi(0))
        else:
            nx = u[j & 1]
            cmac_step(a, nx[0], nx[1], lr, li, cur[0], cur[1], Xr(j), Xi(j))
            cur = nx
    a(f"s_lshl_b32 {sr(st[0])}, {sr(sWn)}, 12")
    a(f"s_add_u32 {sr(st[0])}, {sr(st[0])}, {EXO}")
    a(f"v_and_b32 {vr(vt[1])}, 7, {vr(vLane)}")
    a(f"v_lshlrev_b32 {vr(vt[1])}, 5, {vr(vt[1])}")
    a(f"v_add_u32 {vr(vt[1])}, {sr(st[0])}, {vr(vt[1])}")
    a(f"v_lshl_add_u32 {vr(vt[0])}, {vr(vq16)}, 8, {vr(vt[1])}")
    a(f"ds_write_b128 {vr(vt[0])}, {vr(cur[0],4)}")
    a(f"ds_write_b128 {vr(vt[0])}, {vr(cur[1],4)} offset:16")
    a("s_waitcnt lgkmcnt(0)")
    stamp(a, 4)
    a("s_barrier")
    cl = (Q(), Q())
    eb = [(Q(), Q()), (Q(), Q()), (kr, ki)]
    for i in range(4):
        a(f"v_mov_b32 {vr(cl[0]+i)}, 0")
        a(f"v_mov_b32 {vr(cl[1]+i)}, 0")
    def rde(q):
        b = eb[q % 3]
        a(f"ds_read_b128 {vr(b[0],4)}, {vr(vt[1])} offset:{q*256}")
        a(f"ds_read_b128 {vr(b[1],4)}, {vr(vt[1])} offset:{q*256+16}")
    rde(0); rde(1)
    cur = None
    for q in range(16):
        if q + 2 < 16: rde(q + 2)
        a(f"s_waitcnt lgkmcnt({min(4, 2*(15-q))})")
        b = eb[q % 3]
        if q == 0:
            nx = u[0]
            for i in range(4):
                a(f"v_mov_b32 {vr(nx[0]+i)}, {vr(b[0]+i)}")
                a(f"v_mov_b32 {vr(nx[1]+i)}, {vr(b[1]+i)}")
        else:
            nx = u[q & 1]
            cmac_step(a, nx[0], nx[1], l16r, l16i, cur[0], cur[1], b[0], b[1])
        cur = nx
        if q < 15:
            a(f"v_cmp_eq_u32 vcc, {q+1}, {vr(vq16)}")
            for i in range(4):
                a(f"v_cndmask_b32 {vr(cl[0]+i)}, {vr(cl[0]+i)}, {vr(cur[0]+i)}, vcc")
                a(f"v_cndmask_b32 {vr(cl[1]+i)}, {vr(cl[1]+i)}, {vr(cur[1]+i)}, vcc")
    se = srd(a, R, P_WS, WS_E, 65536)
    a(f"v_and_b32 {vr(vt[0])}, 7, {vr(vLane)}")
    a(f"v_lshlrev_b32 {vr(vt[0])}, 5, {vr(vt[0])}")
    a(f"s_lshl_b32 {sr(st[0])}, {sr(sCB)}, 1")
    a(f"s_add_u32 {sr(st[0])}, {sr(st[0])}, {sr(sWn)}")
    a(f"s_lshl_b32 {sr(st[0])}, {sr(st[0])}, 8")
    a(f"v_add_u32 {vr(vt[0])}, {sr(st[0])}, {vr(vt[0])}")
    a(f"s_lshl_b32 {sr(st[1])}, {sr(sRB)}, 13")
    Lp = uid("Lpub")
    sx = R.S(2, 2)
    a(f"s_cmp_eq_u32 {sr(sWm)}, 0")
    a(f"s_cbranch_scc0 {Lp}")
    a(f"s_mov_b64 {sr(sx,2)}, exec")
    a("s_mov_b64 exec, 0xff")
    a(f"buffer_store_dwordx4 {vr(cur[0],4)}, {vr(vt[0])}, {sr(se,4)}, {sr(st[1])} offen sc1")
    a(f"buffer_store_dwordx4 {vr(cur[1],4)}, {vr(vt[0])}, {sr(se,4)}, {sr(st[1])} offen offset:16 sc1")
    a(f"s_mov_b64 exec, {sr(sx,2)}")
    a("s_waitcnt vmcnt(0)")
    a.label(Lp)
    stamp(a, 5)
    a("s_barrier")
    Ls = uid("Lsig")
    sMask = R.S()
    a(f"s_lshl_b32 {sr(sMask)}, 1, {sr(sRB)}")
    a(f"s_sub_u32 {sr(sMask)}, {sr(sMask)}, 1")
    a(f"s_cmp_eq_u32 {sr(sW)}, 0")
    a(f"s_cbranch_scc0 {Ls}")
    signal(a, R, S1B)
    poll(a, R, S1B, sMask=sMask)
    a.label(Ls)
    a("s_barrier")
    stamp(a, 6)
    ca = u[0]; cb_ = u[1]
    a(f"v_lshrrev_b32 {vr(vt[2])}, 3, {vr(vLane)}")
    a(f"v_lshl_add_u32 {vr(vt[3])}, {vr(vt[2])}, 13, {vr(vt[0])}")
    a(f"buffer_load_dwordx4 {vr(eb[0][0],4)}, {vr(vt[3])}, {sr(se,4)}, 0 offen sc1")
    a(f"buffer_load_dwordx4 {vr(eb[0][1],4)}, {vr(vt[3])}, {sr(se,4)}, 0 offen offset:16 sc1")
    a(f"v_cmp_gt_u32 vcc, {sr(sRB)}, {vr(vt[2])}")
    a("s_waitcnt vmcnt(0)")
    for i in range(4):
        a(f"v_cndmask_b32 {vr(eb[0][0]+i)}, 0, {vr(eb[0][0]+i)}, vcc")
        a(f"v_cndmask_b32 {vr(eb[0][1]+i)}, 0, {vr(eb[0][1]+i)}, vcc")
    cmul(a, ca[0], ca[1], l256r, l256i, eb[0][0], eb[0][1], tq)
    for c_ in range(2):
        for i in range(4):
            a(f"v_add_f32_dpp {vr(cb_[c_]+i)}, {vr(ca[c_]+i)}, {vr(ca[c_]+i)} row_ror:8 row_mask:0xf bank_mask:0xf")
    for sw in ("v_permlane16_swap_b32", "v_permlane32_swap_b32"):
        for c_ in range(2):
            for i in range(4):
                a(f"v_mov_b32 {vr(ca[c_]+i)}, {vr(cb_[c_]+i)}")
        for c_ in range(2):
            for i in range(4):
                a(f"{sw} {vr(cb_[c_]+i)}, {vr(ca[c_]+i)}")
        for c_ in range(2):
            for i in range(4):
                a(f"v_add_f32 {vr(cb_[c_]+i)}, {vr(cb_[c_]+i)}, {vr(ca[c_]+i)}")
    for c_ in range(2):
        for i in range(4):
            a(f"v_mov_b32 {vr(ca[c_]+i)}, {vr(cb_[c_]+i)}")
    cmac_step(a, cb_[0], cb_[1], pwr, pwi, ca[0], ca[1], cl[0], cl[1])
    sa_ = vt[2]
    a(f"v_lshrrev_b32 {vr(vt[1])}, 3, {vr(vLane)}")
    a(f"v_mul_u32_u24 {vr(vt[1])}, 2112, {vr(vt[1])}")
    a(f"v_and_b32 {vr(sa_)}, 7, {vr(vLane)}")
    a(f"v_lshl_add_u32 {vr(sa_)}, {vr(sa_)}, 3, {vr(vt[1])}")
    a(f"v_add_u32 {vr(sa_)}, {sr(sWB)}, {vr(sa_)}")
    prev = cb_
    for j in range(16):
        for h in (0, 2):
            a(pk("fma", Xr(j) + h, lr + h, prev[0] + h, Xr(j) + h))
            a(pk("fma", Xi(j) + h, lr + h, prev[1] + h, Xi(j) + h))
        for h in (0, 2):
            a(pk("fma", Xr(j) + h, li + h, prev[1] + h, Xr(j) + h, neg=0))
            a(pk("fma", Xi(j) + h, li + h, prev[0] + h, Xi(j) + h))
        prev = (Xr(j), Xi(j))
        o = tq + 4 * (j & 1)
        cvt_pk(a, o, Xr(j), Xr(j) + 1); cvt_pk(a, o + 1, Xr(j) + 2, Xr(j) + 3)
        cvt_pk(a, o + 2, Xi(j), Xi(j) + 1); cvt_pk(a, o + 3, Xi(j) + 2, Xi(j) + 3)
        a(f"ds_write_b64 {vr(sa_)}, {vr(o,2)} offset:{j*128}")
        a(f"ds_write_b64 {vr(sa_)}, {vr(o+2,2)} offset:{j*128+64}")
    sh = srd(a, R, P_WS, WS_H, 8 << 20)
    a(f"v_lshrrev_b32 {vr(vt[0])}, 3, {vr(vLane)}")
    a(f"v_and_b32 {vr(vt[3])}, 7, {vr(vLane)}")
    a(f"v_lshlrev_b32 {vr(vt[1])}, 7, {vr(vt[0])}")
    a(f"v_lshl_add_u32 {vr(vt[1])}, {vr(vt[3])}, 4, {vr(vt[1])}")
    a(f"v_add_u32 {vr(vt[1])}, {sr(sWB)}, {vr(vt[1])}")
    a(f"v_lshlrev_b32 {vr(vt[0])}, 12, {vr(vt[0])}")
    a(f"v_lshrrev_b32 {vr(vt[2])}, 2, {vr(vt[3])}")
    a(f"v_lshl_add_u32 {vr(vt[0])}, {vr(vt[2])}, 11, {vr(vt[0])}")
    a(f"v_and_b32 {vr(vt[3])}, 3, {vr(vt[3])}")
    a(f"v_lshl_add_u32 {vr(vt[0])}, {vr(vt[3])}, 4, {vr(vt[0])}")
    a(f"s_lshl_b32 {sr(st[0])}, {sr(sRB)}, 1")
    a(f"s_add_u32 {sr(st[0])}, {sr(st[0])}, {sr(sWm)}")
    a(f"s_lshl_b32 {sr(st[0])}, {sr(st[0])}, 19")
    a(f"s_lshl_b32 {sr(st[1])}, {sr(sCB)}, 1")
    a(f"s_add_u32 {sr(st[1])}, {sr(st[1])}, {sr(sWn)}")
    a(f"s_lshl_b32 {sr(st[1])}, {sr(st[1])}, 6")
    a(f"s_add_u32 {sr(st[0])}, {sr(st[0])}, {sr(st[1])}")
    a(f"v_add_u32 {vr(vt[0])}, {sr(st[0])}, {vr(vt[0])}")
    a("s_waitcnt lgkmcnt(0)")
    for i in range(16):
        a(f"ds_read_b128 {vr(X+4*i,4)}, {vr(vt[1])} offset:{(i>>1)*2112 + (i&1)*1024}")
    for i in range(16):
        a(f"s_waitcnt lgkmcnt({min(15, 15-i)})")
        a(f"s_mov_b32 {sr(st[2])}, {i*8*4096}")
        a(f"buffer_store_dwordx4 {vr(X+4*i,4)}, {vr(vt[0])}, {sr(sh,4)}, {sr(st[2])} offen sc1")
    a("s_waitcnt vmcnt(0)")
    stamp(a, 7)
    a("s_barrier")
    if mega:
        Ls = uid("Lsig")
        a(f"s_cmp_eq_u32 {sr(sW)}, 0")
        a(f"s_cbranch_scc0 {Ls}")
        signal(a, R, S2B)
        a.label(Ls)
    R.release(m0)

def B1_loader(a, R, mega):
    g = GB1
    m0 = R.mark()
    vt, st = temps(R)
    sKA, sKB, sLdW, sLdEnd, sTmp, sCnt = loader_common(a, R, g)
    sRow = R.S()
    a(f"s_lshl_b32 {sr(sRow)}, {sr(sRB)}, 8")
    a(f"s_lshl_b32 {sr(sKA)}, {sr(sRot)}, 7")
    a(f"s_mov_b32 {sr(sKB)}, {sr(sKA)}")
    pcs = x_pieces(a, R, g, P_BX, 2048, sRow, vt, st, sKA)
    sb = [srd(a, R, P_BRE), srd(a, R, P_BIM)]
    vP = vt[3]
    for t in range(g.nB):
        v = R.V()
        a(f"s_lshl_b32 {sr(st[0])}, {sr(sCB)}, 6")
        a(f"s_add_u32 {sr(st[0])}, {sr(st[0])}, {32*(t>>1)}")
        a(f"s_lshl_b32 {sr(st[0])}, {sr(st[0])}, 11")
        a(f"v_add_u32 {vr(v)}, {sr(st[0])}, {vr(vP)}")
        pcs.append((v, sb[t & 1], sKB, g.TM * 128 + t * 4096))
    loader_loop(a, g, pcs, adv_simple(a, g, sKA, sKB, 128, 128), sLdW, sLdEnd, sTmp, sCnt)
    R.release(m0)
    if mega: prefetch_w3(a, R, True)
    for _ in range(4): a("s_barrier")
    a("s_waitcnt vmcnt(0)")
    nonce_fetch(a, R)
    R.release(m0)

def fmap2(xT0, xT1, wfr, t, sL2):
    o = []
    P = [xT1, xT1 + 1, xT1 + 2, xT1 + 3, t, t + 1, t + 2, t + 3]
    EP = t + 4; EM = t + 12; a0 = t + 20; b0 = t + 22; a1 = t + 21; b1 = t + 23
    cp = lambda d, x, y: o.append(f"v_cvt_pk_bf16_f32 {vr(d)}, {vr(x)}, {vr(y)}")
    cp(xT0, xT0, xT0 + 1); cp(xT0 + 1, xT0 + 2, xT0 + 3); cp(xT0 + 2, xT1, xT1 + 1); cp(xT0 + 3, xT1 + 2, xT1 + 3)
    o.append(f"v_mfma_f32_16x16x32_bf16 {vr(xT1,4)}, {vr(wfr[0],4)}, {vr(xT0,4)}, 0")
    o.append(f"v_mfma_f32_16x16x32_bf16 {vr(t,4)}, {vr(wfr[1],4)}, {vr(xT0,4)}, 0")
    for i in range(4): cp(EP + i, P[2*i], P[2*i+1])
    for i in range(4):
        o.append(f"v_lshlrev_b32 {vr(P[2*i])}, 16, {vr(EP+i)}")
        o.append(f"v_and_b32 {vr(P[2*i+1])}, 0xffff0000, {vr(EP+i)}")
    o.append(f"v_max3_f32 {vr(a0)}, {vr(P[0])}, {vr(P[1])}, {vr(P[2])}")
    o.append(f"v_max3_f32 {vr(b0)}, -{vr(P[0])}, -{vr(P[1])}, -{vr(P[2])}")
    o.append(f"v_max3_f32 {vr(a1)}, {vr(P[3])}, {vr(P[4])}, {vr(P[5])}")
    o.append(f"v_max3_f32 {vr(b1)}, -{vr(P[3])}, -{vr(P[4])}, -{vr(P[5])}")
    o.append(f"v_max3_f32 {vr(a0)}, {vr(a0)}, {vr(P[6])}, {vr(P[7])}")
    o.append(f"v_max3_f32 {vr(b0)}, {vr(b0)}, -{vr(P[6])}, -{vr(P[7])}")
    o.append(f"v_max_f32 {vr(a0)}, {vr(a0)}, {vr(a1)}")
    o.append(f"v_max_f32 {vr(b0)}, {vr(b0)}, {vr(b1)}")
    def red(op):
        o.append(f"v_permlane32_swap_b32 {vr(a0)}, {vr(b0)}")
        o.append(f"{op} {vr(a0)}, {vr(a0)}, {vr(b0)}")
        o.append(f"v_mov_b32 {vr(b0)}, {vr(a0)}")
        o.append(f"v_permlane16_swap_b32 {vr(a0)}, {vr(b0)}")
        o.append(f"{op} {vr(a0)}, {vr(a0)}, {vr(b0)}")
        o.append(f"v_mov_b32 {vr(b0)}, {vr(a0)}")
        o.append(f"v_permlane32_swap_b32 {vr(a0)}, {vr(b0)}")
    red("v_max_f32")
    o.append(f"v_mul_f32 {vr(a0)}, {sr(sL2)}, {vr(a0)}")
    o.append(f"v_mul_f32 {vr(b0)}, {sr(sL2)}, {vr(b0)}")
    for i in range(4):
        o.append(f"v_pk_fma_f32 {vr(EP+2*i,2)}, {vr(P[2*i],2)}, {sr(sL2,2)}, {vr(a0,2)} op_sel_hi:[1,1,0] neg_lo:[0,0,1] neg_hi:[0,0,1]")
        o.append(f"v_pk_fma_f32 {vr(EM+2*i,2)}, {vr(P[2*i],2)}, {sr(sL2,2)}, {vr(b0,2)} op_sel_hi:[1,1,0] neg_lo:[1,0,1] neg_hi:[1,0,1]")
    for i in range(8):
        o.append(f"v_exp_f32 {vr(EP+i)}, {vr(EP+i)}")
        o.append(f"v_exp_f32 {vr(EM+i)}, {vr(EM+i)}")
    for (E, S) in ((EP, t), (EM, xT1)):
        o.append(f"v_pk_add_f32 {vr(S,2)}, {vr(E,2)}, {vr(E+2,2)}")
        o.append(f"v_pk_add_f32 {vr(S+2,2)}, {vr(E+4,2)}, {vr(E+6,2)}")
    for (E, S) in ((EP, t), (EM, xT1)):
        o.append(f"v_pk_add_f32 {vr(S,2)}, {vr(S,2)}, {vr(S+2,2)}")
    o.append(f"v_add_f32 {vr(a0)}, {vr(t)}, {vr(t+1)}")
    o.append(f"v_add_f32 {vr(b0)}, {vr(xT1)}, {vr(xT1+1)}")
    red("v_add_f32")
    o.append(f"v_rcp_f32 {vr(a0)}, {vr(a0)}")
    o.append(f"v_rcp_f32 {vr(b0)}, {vr(b0)}")
    for i in range(4):
        o.append(f"v_pk_mul_f32 {vr(EP+2*i,2)}, {vr(EP+2*i,2)}, {vr(a0,2)} op_sel_hi:[1,0]")
        o.append(f"v_pk_mul_f32 {vr(EM+2*i,2)}, {vr(EM+2*i,2)}, {vr(b0,2)} op_sel_hi:[1,0]")
    for i in range(4):
        cp(xT0 + i, EP + 2*i, EP + 2*i + 1)
        cp(xT1 + i, EM + 2*i, EM + 2*i + 1)
    return o

AH_S = 16
AH_BBASE = 98304
def AH_kv(a, R):
    m0 = R.mark()
    vt, st = temps(R)
    sOA, sOB, sCnt, sHead = R.S(), R.S(), R.S(), R.S()
    sL2 = R.S(2, 2)
    a(f"s_lshr_b32 {sr(sWm)}, {sr(sW)}, 1")
    a(f"s_and_b32 {sr(sWn)}, {sr(sW)}, 1")
    a(f"s_lshl_b32 {sr(sHead)}, {sr(sCB)}, 1")
    a(f"s_add_u32 {sr(sHead)}, {sr(sHead)}, {sr(sWn)}")
    a(f"s_mov_b32 {sr(sL2)}, {LOG2E}\ns_mov_b32 {sr(sL2+1)}, {LOG2E}")
    acc = [[R.V(4) for _ in range(4)] for _ in range(8)]
    wfr = wphi_frags(a, R, sHead, vt, st, acc[0][0])
    m1 = R.mark()
    a(f"s_lshl_b32 {sr(st[0])}, {sr(sWm)}, 14")
    rd = {'A': rd_MK(a, R, vLane, vt, st[0], 0), 'B': rd_KN(a, R, vLane, vt, AH_BBASE)}
    adv = (f"s_add_u32 {sr(sOA)}, {sr(sOA)}, 32768\ns_cmp_ge_u32 {sr(sOA)}, 98304\ns_cselect_b32 {sr(sOA)}, 0, {sr(sOA)}\n"
           f"s_add_u32 {sr(sOB)}, {sr(sOB)}, 24576\ns_and_b32 {sr(sOB)}, {sr(sOB)}, 0xffff")
    cl = CLoop(a, R, 8, 4, 'KN', rd, acc, lambda m, n: n < 2, sOA, sOB, adv)
    cl.zero()
    a(f"s_mov_b32 {sr(sOA)}, 0")
    a(f"s_lshl_b32 {sr(sOB)}, {sr(sWn)}, 13")
    for x in cl.au(): a(x)
    nonce_issue(a, R, vt)
    stamp(a, 1)
    a("s_barrier")
    stamp(a, 2)
    cl.first_reads()
    cl.loop(AH_S, sCnt)
    a("s_waitcnt lgkmcnt(0)")
    nonce_finish(a, R, vt)
    R.release(m1)
    stamp(a, 3)
    tmp = [R.V(24, 4), R.V(24, 4)]
    Tt = [[tmp[h] + 4 * f for f in range(4)] for h in range(2)]
    ident = [R.V(4), R.V(4)]
    ones = R.V(4)
    Af = [R.V(4), R.V(4)]; Bv = [R.V(4), R.V(4)]
    kv = [[None] * 3 for _ in range(4)]
    a(f"v_and_b32 {vr(vt[0])}, 15, {vr(vLane)}")
    a(f"v_lshrrev_b32 {vr(vt[1])}, 4, {vr(vLane)}")
    a(f"v_lshlrev_b32 {vr(vt[1])}, 2, {vr(vt[1])}")
    a(f"v_sub_u32 {vr(vt[0])}, {vr(vt[0])}, {vr(vt[1])}")
    a(f"v_mov_b32 {vr(vt[2])}, 0x3f80")
    a(f"v_mov_b32 {vr(vt[3])}, 0x3f800000")
    for jj in range(2):
        a(f"v_cmp_eq_u32 vcc, {2*jj}, {vr(vt[0])}")
        a(f"v_cmp_eq_u32 {sr(st[0],2)}, {2*jj+1}, {vr(vt[0])}")
        a(f"v_cndmask_b32 {vr(ident[0]+jj)}, 0, {vr(vt[2])}, vcc")
        a(f"v_cndmask_b32 {vr(ident[0]+jj)}, {vr(ident[0]+jj)}, {vr(vt[3])}, {sr(st[0],2)}")
    for jj in range(2):
        a(f"v_mov_b32 {vr(ident[1]+2+jj)}, {vr(ident[0]+jj)}")
        a(f"v_mov_b32 {vr(ident[0]+2+jj)}, 0")
        a(f"v_mov_b32 {vr(ident[1]+jj)}, 0")
    for i in range(4): a(f"v_mov_b32 {vr(ones+i)}, 0x3f803f80")
    pool = None
    for sp_ in range(4):
        s0_, s1_ = 2 * sp_, 2 * sp_ + 1
        vcv = []
        for dt in range(2):
            vcv += [f"v_cvt_pk_bf16_f32 {vr(Bv[dt])}, {vr(acc[s0_][2+dt])}, {vr(acc[s0_][2+dt]+1)}",
                    f"v_cvt_pk_bf16_f32 {vr(Bv[dt]+1)}, {vr(acc[s0_][2+dt]+2)}, {vr(acc[s0_][2+dt]+3)}",
                    f"v_cvt_pk_bf16_f32 {vr(Bv[dt]+2)}, {vr(acc[s1_][2+dt])}, {vr(acc[s1_][2+dt]+1)}",
                    f"v_cvt_pk_bf16_f32 {vr(Bv[dt]+3)}, {vr(acc[s1_][2+dt]+2)}, {vr(acc[s1_][2+dt]+3)}"]
        for x in merge(fmap2(acc[s0_][0], acc[s0_][1], wfr, tmp[0], sL2), fmap2(acc[s1_][0], acc[s1_][1], wfr, tmp[1], sL2)): a(x)
        for x in vcv: a(x)
        for sgn in range(2):
            for ft in range(2):
                for h in range(2):
                    a(f"v_mfma_f32_16x16x32_bf16 {vr(Tt[h][2*sgn+ft],4)}, {vr(acc[2*sp_+h][sgn],4)}, {vr(ident[ft],4)}, 0")
        if pool is None:
            pool = [acc[0][2], acc[0][3], acc[1][2], acc[1][3]] + [R.V(4) for _ in range(4)] + [acc[0][0], acc[0][1], acc[1][0], acc[1][1]]
            for f4 in range(4):
                for c in range(3): kv[f4][c] = pool[f4 * 3 + c]
        for f4 in range(4):
            A_ = Af[f4 & 1]
            cvt_pk(a, A_, Tt[0][f4], Tt[0][f4] + 1); cvt_pk(a, A_ + 1, Tt[0][f4] + 2, Tt[0][f4] + 3)
            cvt_pk(a, A_ + 2, Tt[1][f4], Tt[1][f4] + 1); cvt_pk(a, A_ + 3, Tt[1][f4] + 2, Tt[1][f4] + 3)
            for c in range(3):
                B_ = Bv[c] if c < 2 else ones
                C_ = "0" if sp_ == 0 else vr(kv[f4][c], 4)
                a(f"v_mfma_f32_16x16x32_bf16 {vr(kv[f4][c],4)}, {vr(A_,4)}, {vr(B_,4)}, {C_}")
    tiles = [kv[t >> 1][t & 1] for t in range(8)] + [kv[f4][2] for f4 in range(4)]
    vA = vt[0]
    a(f"s_mul_i32 {sr(st[0])}, {sr(sW)}, {6*1024}")
    a(f"s_add_u32 {sr(st[0])}, {sr(st[0])}, {SCR}")
    a(f"v_lshlrev_b32 {vr(vA)}, 4, {vr(vLane)}")
    a(f"v_add_u32 {vr(vt[1])}, {sr(st[0])}, {vr(vA)}")
    a(f"s_xor_b32 {sr(st[1])}, {sr(sW)}, 2")
    a(f"s_mul_i32 {sr(st[1])}, {sr(st[1])}, {6*1024}")
    a(f"s_add_u32 {sr(st[1])}, {sr(st[1])}, {SCR}")
    a(f"v_add_u32 {vr(vt[2])}, {sr(st[1])}, {vr(vA)}")
    Lw1 = uid("Lx1"); Lw2 = uid("Lx2")
    a(f"s_cmp_eq_u32 {sr(sWm)}, 0")
    a(f"s_cbranch_scc0 {Lw1}")
    for i in range(6): a(f"ds_write_b128 {vr(vt[1])}, {vr(tiles[6+i],4)} offset:{i*1024}")
    a(f"s_branch {Lw2}")
    a.label(Lw1)
    for i in range(6): a(f"ds_write_b128 {vr(vt[1])}, {vr(tiles[i],4)} offset:{i*1024}")
    for i in range(6):
        for k in range(4): a(f"v_mov_b32 {vr(tiles[i]+k)}, {vr(tiles[6+i]+k)}")
    a.label(Lw2)
    a("s_waitcnt lgkmcnt(0)")
    stamp(a, 4)
    a("s_barrier")
    for i in range(6): a(f"ds_read_b128 {vr(tiles[6+i],4)}, {vr(vt[2])} offset:{i*1024}")
    sk = srd(a, R, P_WS, WS_KVP, 3 << 20)
    a(f"s_lshl_b32 {sr(st[0])}, {sr(sRB)}, 5")
    a(f"s_add_u32 {sr(st[0])}, {sr(st[0])}, {sr(sHead)}")
    a(f"s_mul_i32 {sr(st[0])}, {sr(st[0])}, 12")
    a(f"s_mul_i32 {sr(st[1])}, {sr(sWm)}, 6")
    a(f"s_add_u32 {sr(st[0])}, {sr(st[0])}, {sr(st[1])}")
    a(f"s_lshl_b32 {sr(st[0])}, {sr(st[0])}, 10")
    a(f"v_add_u32 {vr(vt[1])}, {sr(st[0])}, {vr(vA)}")
    for i in range(6):
        a(f"s_waitcnt lgkmcnt({5-i})")
        for k in range(4): a(f"v_add_f32 {vr(tiles[i]+k)}, {vr(tiles[i]+k)}, {vr(tiles[6+i]+k)}")
        a(f"s_mov_b32 {sr(st[2])}, {i*1024}")
        a(f"buffer_store_dwordx4 {vr(tiles[i],4)}, {vr(vt[1])}, {sr(sk,4)}, {sr(st[2])} offen sc1")
    a("s_waitcnt vmcnt(0)")
    stamp(a, 5)
    a("s_barrier")
    Ls = uid("Lsig")
    a(f"s_cmp_eq_u32 {sr(sW)}, 0")
    a(f"s_cbranch_scc0 {Ls}")
    signal(a, R, S1A)
    a.label(Ls)
    a("s_barrier")
    a("s_barrier")
    R.release(m0)

KVL2 = 64 * 1024
FLAG2 = 100 * 1024
def AH_q(a, R):
    m0 = R.mark()
    vt, st = temps(R)
    sOA, sOB, sCnt = R.S(), R.S(), R.S()
    sL2 = R.S(2, 2)
    acc = [[R.V(4) for _ in range(4)] for _ in range(4)]
    wraw = [[R.V(4), R.V(4)] for _ in range(2)]
    m1 = R.mark()
    sKA, sKkv, sKq, sLdA, sSlot, sRow = [R.S() for _ in range(6)]
    a(f"s_lshl_b32 {sr(sRow)}, {sr(sRB)}, 8")
    a(f"s_lshl_b32 {sr(sKA)}, {sr(sRot)}, 7")
    a(f"s_mul_i32 {sr(sKkv)}, {sr(sRot)}, {64*6144}")
    a(f"s_mov_b32 {sr(sKq)}, {sr(sKkv)}")
    a(f"s_lshl_b32 {sr(sLdA)}, {sr(sLW)}, 10")
    a(f"s_mov_b32 {sr(sSlot)}, {sr(sLdA)}")
    pA = x_pieces(a, R, GA1, P_AX, 2048, sRow, vt, st, sKA)
    sw = srd(a, R, P_WQKV)
    vP = vt[3]
    lanepat_kn(a, vP, vt, vLane, sLW, 6144, st, split=2048)
    pkv = []
    for t in range(4):
        v = R.V()
        a(f"s_lshl_b32 {sr(st[0])}, {sr(sCB)}, 7")
        a(f"s_add_u32 {sr(st[0])}, {sr(st[0])}, {(1024 + (t>>1)*32)*2 + 32*(t&1)*6144}")
        a(f"v_add_u32 {vr(v)}, {sr(st[0])}, {vr(vP)}")
        pkv.append(v)
    lanepat_kn(a, vP, vt, vLane, sLW, 6144, st)
    pq = []
    for t in range(2):
        v = R.V()
        a(f"s_lshl_b32 {sr(st[0])}, {sr(sCB)}, 7")
        a(f"s_add_u32 {sr(st[0])}, {sr(st[0])}, {32*t*6144}")
        a(f"v_add_u32 {vr(v)}, {sr(st[0])}, {vr(vP)}")
        pq.append(v)
    KW = 64 * 6144
    def wrap(sk, step, lim):
        return f"s_add_u32 {sr(sk)}, {sr(sk)}, {step}\ns_cmp_ge_u32 {sr(sk)}, {lim}\ns_cselect_b32 {sr(sk)}, 0, {sr(sk)}"
    slotadv = f"s_add_u32 {sr(sSlot)}, {sr(sSlot)}, 8192\ns_and_b32 {sr(sSlot)}, {sr(sSlot)}, 0xffff"
    def iA():
        o = [f"s_add_u32 m0, {sr(sLdA)}, {t*4096}\nbuffer_load_dwordx4 {vr(v)}, {sr(sx,4)}, {sr(so)} offen lds" for t, (v, sx, so, lo) in enumerate(pA)]
        o.append(wrap(sKA, 128, 2048) + f"\ns_add_u32 {sr(sLdA)}, {sr(sLdA)}, 32768\ns_cmp_ge_u32 {sr(sLdA)}, 98304\ns_cselect_b32 {sr(st[3])}, 98304, 0\ns_sub_u32 {sr(sLdA)}, {sr(sLdA)}, {sr(st[3])}")
        return o
    def iKV():
        o = []
        for u in range(2):
            for tt in range(2):
                o.append(f"s_add_u32 m0, {sr(sSlot)}, {AH_BBASE + tt*4096}\nbuffer_load_dwordx4 {vr(pkv[2*u+tt])}, {sr(sw,4)}, {sr(sKkv)} offen lds" + ("\n" + slotadv if tt else ""))
        o.append(wrap(sKkv, KW, KW * 16))
        return o
    def iQ():
        o = []
        for tt in range(2):
            o.append(f"s_add_u32 m0, {sr(sSlot)}, {AH_BBASE + tt*4096}\nbuffer_load_dwordx4 {vr(pq[tt])}, {sr(sw,4)}, {sr(sKq)} offen lds" + ("\n" + slotadv if tt else ""))
        o.append(wrap(sKq, KW, KW * 16))
        return o
    for x in iA() + iKV() + iQ() + iA() + iKV(): a(x)
    a(f"s_mov_b32 {sr(sL2)}, {LOG2E}\ns_mov_b32 {sr(sL2+1)}, {LOG2E}")
    a(f"s_lshl_b32 {sr(st[0])}, {sr(sLW)}, 13")
    rd = {'A': rd_MK(a, R, vLane, vt, st[0], 0), 'B': rd_KN(a, R, vLane, vt, AH_BBASE)}
    adv = (f"s_add_u32 {sr(sOA)}, {sr(sOA)}, 32768\ns_cmp_ge_u32 {sr(sOA)}, 98304\ns_cselect_b32 {sr(sOA)}, 0, {sr(sOA)}\n"
           f"s_add_u32 {sr(sOB)}, {sr(sOB)}, 24576\ns_and_b32 {sr(sOB)}, {sr(sOB)}, 0xffff")
    cl = CLoop(a, R, 4, 4, 'KN', rd, acc, lambda m, n: True, sOA, sOB, adv)
    cl.zero()
    a(f"s_mov_b32 {sr(sOA)}, 0")
    a(f"s_mov_b32 {sr(sOB)}, 16384")
    for x in cl.au(): a(x)
    vW = R.V()
    swp = srd(a, R, P_WPHI)
    a(f"v_lshrrev_b32 {vr(vt[0])}, 2, {vr(vLane)}")
    a(f"v_lshlrev_b32 {vr(vW)}, 6, {vr(vt[0])}")
    a(f"v_and_b32 {vr(vt[0])}, 3, {vr(vLane)}")
    a(f"v_lshl_add_u32 {vr(vW)}, {vr(vt[0])}, 3, {vr(vW)}")
    a(f"s_lshl_b32 {sr(st[2])}, {sr(sCB)}, 12")
    a(f"v_add_u32 {vr(vW)}, {sr(st[2])}, {vr(vW)}")
    wl = [f"buffer_load_dwordx2 {vr(wraw[hh][ft]+2*t,2)}, {vr(vW)}, {sr(swp,4)}, 0 offen offset:{hh*2048 + t*1024 + ft*32}"
          for hh in range(2) for ft in range(2) for t in range(2)]
    if QPRIO: a("s_setprio 2")
    a("s_waitcnt vmcnt(12)")
    a("s_barrier")
    for x in iQ() + iA() + iKV(): a(x)
    cl.first_reads()
    cl.loop(AH_S - 3, sCnt, post=iQ() + iA() + iKV(), prewait="s_waitcnt vmcnt(12)")
    cl.body(post=iQ() + wl, prewait="s_waitcnt vmcnt(12)")
    cl.body(prewait="s_waitcnt vmcnt(8)")
    cl.body()
    if QPRIO: a("s_setprio 0")
    a("s_waitcnt lgkmcnt(0)")
    R.release(m1)
    stamp(a, 3)
    prefetch_after = True
    a(f"s_lshl_b32 {sr(st[0])}, {sr(sLW)}, 12")
    a(f"v_lshlrev_b32 {vr(vt[0])}, 3, {vr(vLane)}")
    a(f"v_add_u32 {vr(vt[0])}, {sr(st[0])}, {vr(vt[0])}")
    a("s_waitcnt vmcnt(0)")
    k = 0
    for hh in range(2):
        for ft in range(2):
            for t in range(2):
                a(f"ds_write_b64 {vr(vt[0])}, {vr(wraw[hh][ft]+2*t,2)} offset:{k*512}"); k += 1
    a(f"v_mov_b32 {vr(vt[1])}, {FLAG2}")
    a(f"v_mov_b32 {vr(vt[2])}, 0")
    a(f"ds_write_b32 {vr(vt[1])}, {vr(vt[2])}")
    a("s_waitcnt lgkmcnt(0)")
    k = 0
    for hh in range(2):
        for ft in range(2):
            for t in range(2):
                a(f"ds_read_b64_tr_b16 {vr(wraw[hh][ft]+2*t,2)}, {vr(vt[0])} offset:{k*512}"); k += 1
    m2 = R.mark()
    prefetch_w3(a, R, False)
    tmp = [R.V(24, 4) for _ in range(4)]
    a("s_waitcnt lgkmcnt(0)")
    for half in range(2):
        st_l = []
        for i in range(4):
            stt, hh = 2 * half + (i >> 1), i & 1
            st_l.append(fmap2(acc[stt][2*hh], acc[stt][2*hh+1], wraw[hh], tmp[i], sL2))
        for x in merge(*st_l): a(x)
    stamp(a, 4)
    a("s_barrier")
    a("s_barrier")
    a("s_waitcnt vmcnt(0)")
    R.release(m2)
    nonce_fetch(a, R)
    Lq = uid("Lq"); Lq2 = uid("Lq2")
    a(f"v_mov_b32 {vr(vt[0])}, {FLAG2}")
    a(f"s_cmp_eq_u32 {sr(sLW)}, 0")
    a(f"s_cbranch_scc0 {Lq}")
    poll(a, R, S1A)
    a(f"v_mov_b32 {vr(vt[1])}, 1")
    a(f"ds_write_b32 {vr(vt[0])}, {vr(vt[1])}")
    a(f"s_branch {Lq2}")
    a.label(Lq)
    a(f"ds_read_b32 {vr(vt[1])}, {vr(vt[0])}")
    a("s_waitcnt lgkmcnt(0)")
    a(f"v_readfirstlane_b32 {sr(st[0])}, {vr(vt[1])}")
    a(f"s_cmp_eq_u32 {sr(st[0])}, 1")
    a(f"s_cbranch_scc1 {Lq2}")
    a("s_sleep 1")
    a(f"s_branch {Lq}")
    a.label(Lq2)
    stamp(a, 6)
    sk = srd(a, R, P_WS, WS_KVP, 3 << 20)
    buf = [[R.V(4) for _ in range(8)] for _ in range(4)]
    res = [R.V(2) for _ in range(6)]
    a(f"s_mul_i32 {sr(st[0])}, {sr(sCB)}, 24")
    a(f"s_mul_i32 {sr(st[1])}, {sr(sLW)}, 6")
    a(f"s_add_u32 {sr(st[0])}, {sr(st[0])}, {sr(st[1])}")
    a(f"s_lshl_b32 {sr(st[0])}, {sr(st[0])}, 10")
    a(f"v_lshlrev_b32 {vr(vt[0])}, 4, {vr(vLane)}")
    a(f"v_add_u32 {vr(vt[1])}, {sr(st[0])}, {vr(vt[0])}")
    def gl(i):
        for r in range(8):
            a(f"s_mov_b32 {sr(st[2])}, {r*32*12*1024 + i*1024}")
            a(f"buffer_load_dwordx4 {vr(buf[i&3][r],4)}, {vr(vt[1])}, {sr(sk,4)}, {sr(st[2])} offen sc1")
    for i in range(4): gl(i)
    def dest(t):
        if t < 8: return ((t >> 2) * 2 + (t & 1)) * 1024 + ((t >> 1) & 1) * 8
        f4 = t - 8
        return (4 + (f4 >> 1)) * 1024 + (f4 & 1) * 8
    a(f"s_lshr_b32 {sr(st[0])}, {sr(sLW)}, 1")
    a(f"s_mul_i32 {sr(st[0])}, {sr(st[0])}, {6*1024}")
    a(f"s_add_u32 {sr(st[0])}, {sr(st[0])}, {KVL2}")
    a(f"v_add_u32 {vr(vt[0])}, {sr(st[0])}, {vr(vt[0])}")
    for i in range(6):
        issued = min(6, i + 4)
        a(f"s_waitcnt vmcnt({(issued - i - 1)*8})")
        b = buf[i & 3]
        for (x, y) in ((0, 1), (2, 3), (4, 5), (6, 7), (0, 2), (4, 6), (0, 4)):
            for h in (0, 2):
                a(f"v_pk_add_f32 {vr(b[x]+h,2)}, {vr(b[x]+h,2)}, {vr(b[y]+h,2)}")
        cvt_pk(a, res[i], b[0], b[0] + 1); cvt_pk(a, res[i] + 1, b[0] + 2, b[0] + 3)
        if i + 4 < 6: gl(i + 4)
    Lo = uid("Lg1"); Le = uid("Lg2")
    a(f"s_bitcmp1_b32 {sr(sLW)}, 0")
    a(f"s_cbranch_scc1 {Lo}")
    for i in range(6): a(f"ds_write_b64 {vr(vt[0])}, {vr(res[i],2)} offset:{dest(i)}")
    a(f"s_branch {Le}")
    a.label(Lo)
    for i in range(6): a(f"ds_write_b64 {vr(vt[0])}, {vr(res[i],2)} offset:{dest(6+i)}")
    a.label(Le)
    a("s_waitcnt lgkmcnt(0)")
    R.release(m2)
    stamp(a, 7)
    a("s_barrier")
    kvf = [[R.V(4) for _ in range(6)] for _ in range(2)]
    a(f"v_lshlrev_b32 {vr(vt[0])}, 4, {vr(vLane)}")
    a(f"v_add_u32 {vr(vt[0])}, {KVL2}, {vr(vt[0])}")
    for hh in range(2):
        for f in range(6):
            a(f"ds_read_b128 {vr(kvf[hh][f],4)}, {vr(vt[0])} offset:{(hh*6+f)*1024}")
    a(f"v_and_b32 {vr(vt[1])}, 15, {vr(vLane)}")
    a(f"v_lshlrev_b32 {vr(vt[1])}, 7, {vr(vt[1])}")
    a(f"v_lshrrev_b32 {vr(vt[2])}, 5, {vr(vLane)}")
    a(f"v_xor_b32 {vr(vt[2])}, {vr(vt[2])}, {vr(vLane)}")
    a(f"v_and_b32 {vr(vt[2])}, 7, {vr(vt[2])}")
    a(f"v_lshl_add_u32 {vr(vt[1])}, {vr(vt[2])}, 4, {vr(vt[1])}")
    a(f"v_bfe_u32 {vr(vt[2])}, {vr(vLane)}, 4, 1")
    a(f"v_lshl_add_u32 {vr(vt[1])}, {vr(vt[2])}, 3, {vr(vt[1])}")
    a(f"s_lshl_b32 {sr(st[0])}, {sr(sLW)}, 13")
    a(f"v_add_u32 {vr(vt[1])}, {sr(st[0])}, {vr(vt[1])}")
    vst = [R.V() for _ in range(4)]
    for c in range(4): a(f"v_xor_b32 {vr(vst[c])}, {c*32}, {vr(vt[1])}")
    a(f"s_mov_b32 {sr(st[1])}, 0x358637bd")
    ot = [R.V(20, 4) for _ in range(4)]
    a("s_waitcnt lgkmcnt(0)")
    def ocalc(stt, hh, t):
        N = t; D = t + 8; Q = t + 12
        p = (acc[stt][2*hh], acc[stt][2*hh+1])
        o = []
        for dt in range(2):
            o.append(f"v_mfma_f32_16x16x32_bf16 {vr(N+4*dt,4)}, {vr(kvf[hh][dt],4)}, {vr(p[0],4)}, 0")
        o.append(f"v_mfma_f32_16x16x32_bf16 {vr(D,4)}, {vr(kvf[hh][4],4)}, {vr(p[0],4)}, 0")
        for dt in range(2):
            o.append(f"v_mfma_f32_16x16x32_bf16 {vr(N+4*dt,4)}, {vr(kvf[hh][2+dt],4)}, {vr(p[1],4)}, {vr(N+4*dt,4)}")
        o.append(f"v_mfma_f32_16x16x32_bf16 {vr(D,4)}, {vr(kvf[hh][5],4)}, {vr(p[1],4)}, {vr(D,4)}")
        for i in range(4): o.append(f"v_cvt_pk_bf16_f32 {vr(Q+4+i)}, {vr(N+2*i)}, {vr(N+2*i+1)}")
        o.append(f"v_cvt_pk_bf16_f32 {vr(Q)}, {vr(D)}, {vr(D)}")
        for i in range(4):
            o.append(f"v_lshlrev_b32 {vr(N+2*i)}, 16, {vr(Q+4+i)}")
            o.append(f"v_and_b32 {vr(N+2*i+1)}, 0xffff0000, {vr(Q+4+i)}")
        o.append(f"v_and_b32 {vr(Q)}, 0xffff0000, {vr(Q)}")
        o.append(f"v_add_f32 {vr(Q)}, {sr(st[1])}, {vr(Q)}")
        o.append(f"v_cvt_pk_bf16_f32 {vr(Q)}, {vr(Q)}, {vr(Q)}")
        o.append(f"v_and_b32 {vr(Q)}, 0xffff0000, {vr(Q)}")
        o.append(f"v_rcp_f32 {vr(Q)}, {vr(Q)}")
        for i in range(4): o.append(f"v_pk_mul_f32 {vr(N+2*i,2)}, {vr(N+2*i,2)}, {vr(Q,2)} op_sel_hi:[1,0]")
        for i in range(4): o.append(f"v_cvt_pk_bf16_f32 {vr(Q+4+i)}, {vr(N+2*i)}, {vr(N+2*i+1)}")
        for dt in range(2): o.append(f"ds_write_b64 {vr(vst[hh*2+dt])}, {vr(Q+4+2*dt,2)} offset:{stt*2048}")
        return o
    for half in range(2):
        for x in merge(*[ocalc(2*half + (i >> 1), i & 1, ot[i]) for i in range(4)]): a(x)
    so = srd(a, R, P_WS, WS_O, 4 << 20)
    a(f"v_lshrrev_b32 {vr(vt[0])}, 3, {vr(vLane)}")
    a(f"v_xor_b32 {vr(vt[2])}, {vr(vt[0])}, {vr(vLane)}")
    a(f"v_and_b32 {vr(vt[2])}, 7, {vr(vt[2])}")
    a(f"v_lshlrev_b32 {vr(vt[1])}, 7, {vr(vt[0])}")
    a(f"v_lshl_add_u32 {vr(vt[1])}, {vr(vt[2])}, 4, {vr(vt[1])}")
    a(f"v_add_u32 {vr(vt[1])}, {sr(st[0])}, {vr(vt[1])}")
    a(f"v_lshlrev_b32 {vr(vt[2])}, 11, {vr(vt[0])}")
    a(f"v_and_b32 {vr(vt[3])}, 7, {vr(vLane)}")
    a(f"v_lshl_add_u32 {vr(vt[2])}, {vr(vt[3])}, 4, {vr(vt[2])}")
    a(f"s_lshl_b32 {sr(st[2])}, {sr(sRB)}, 2")
    a(f"s_add_u32 {sr(st[2])}, {sr(st[2])}, {sr(sLW)}")
    a(f"s_lshl_b32 {sr(st[2])}, {sr(st[2])}, 17")
    a(f"s_lshl_b32 {sr(st[3])}, {sr(sCB)}, 7")
    a(f"s_add_u32 {sr(st[2])}, {sr(st[2])}, {sr(st[3])}")
    a(f"v_add_u32 {vr(vt[2])}, {sr(st[2])}, {vr(vt[2])}")
    a("s_waitcnt lgkmcnt(0)")
    bufo = [acc[i >> 2][i & 3] for i in range(8)]
    for i in range(8): a(f"ds_read_b128 {vr(bufo[i],4)}, {vr(vt[1])} offset:{i*1024}")
    for i in range(8):
        a(f"s_waitcnt lgkmcnt({7-i})")
        a(f"s_mov_b32 {sr(st[3])}, {i*8*2048}")
        a(f"buffer_store_dwordx4 {vr(bufo[i],4)}, {vr(vt[2])}, {sr(so,4)}, {sr(st[3])} offen sc1")
    a("s_waitcnt vmcnt(0)")
    stamp(a, 10)
    a("s_barrier")
    Ls = uid("Lsig")
    a(f"s_cmp_eq_u32 {sr(sLW)}, 0")
    a(f"s_cbranch_scc0 {Ls}")
    signal(a, R, S2A)
    a.label(Ls)
    R.release(m0)

def kernel(name, phasesA, phasesB, mega, kidx=0):
    a = Asm()
    a.raw(f".globl {name}\n.p2align 8\n.type {name},@function")
    a.label(name)
    Lend = uid("Lend")
    a("s_cmp_ge_u32 s2, 256")
    a(f"s_cbranch_scc1 {Lend}")
    a(f"s_load_dwordx16 s[{SP}:{SP+15}], s[0:1], 0")
    a(f"s_load_dwordx16 s[{SP+16}:{SP+31}], s[0:1], 64")
    a(f"v_and_b32 {vr(vLane)}, 63, v0")
    a("v_lshrrev_b32 v0, 6, v0")
    a(f"v_readfirstlane_b32 {sr(sW)}, v0")
    if MIX:
        a("s_and_b32 s3, s2, 1")
        a(f"s_lshl_b32 {sr(sRB)}, s3, 2")
        a("s_bfe_u32 s3, s2, 0x20004")
        a(f"s_add_u32 {sr(sRB)}, {sr(sRB)}, s3")
        a("s_bfe_u32 s3, s2, 0x20001")
        a(f"s_lshl_b32 {sr(sCB)}, s3, 2")
        a("s_lshr_b32 s3, s2, 6")
        a(f"s_add_u32 {sr(sCB)}, {sr(sCB)}, s3")
        a(f"s_bfe_u32 {sr(sRot)}, s2, 0x40004")
    else:
        a("s_and_b32 s3, s2, 1")
        a(f"s_lshl_b32 {sr(sRB)}, s3, 2")
        a("s_bfe_u32 s3, s2, 0x20003")
        a(f"s_add_u32 {sr(sRB)}, {sr(sRB)}, s3")
        a("s_bfe_u32 s3, s2, 0x10001")
        a(f"s_lshl_b32 {sr(sCB)}, s3, 3")
        a("s_lshr_b32 s3, s2, 5")
        a(f"s_add_u32 {sr(sCB)}, {sr(sCB)}, s3")
        a(f"s_bfe_u32 {sr(sRot)}, s2, 0x40003")
        if MAPA:
            Lm = uid("Lmap")
            a("s_bitcmp1_b32 s2, 2")
            a(f"s_cbranch_scc1 {Lm}")
            a(f"s_bfe_u32 {sr(sRB)}, s2, 0x30003")
            a("s_and_b32 s3, s2, 3")
            a(f"s_lshl_b32 {sr(sCB)}, s3, 2")
            a("s_lshr_b32 s3, s2, 6")
            a(f"s_add_u32 {sr(sCB)}, {sr(sCB)}, s3")
            a.label(Lm)
    a(f"s_sub_u32 {sr(sLW)}, {sr(sW)}, 4")
    a("s_waitcnt lgkmcnt(0)")
    streams = {}
    vmax = 0; smax = 0
    for chain, phases in (("A", phasesA), ("B", phasesB)):
        for role in ("c", "l"):
            s = Asm(); R = Regs(VBASE, SBASE)
            prev = None
            if STAMPS:
                for i in range(NST_): s(f"s_mov_b32 {sr(ST0+i)}, 0")
            stamp(s, 0)
            for ph in phases:
                if ph == "A1": (A1_compute if role == "c" else A1_loader)(s, R, mega)
                elif ph == "A2":
                    if role == "c": A2_compute(s, R, mega)
                    else: A2_loader(s, R, mega, 2 if prev == "A1" else 0)
                elif ph == "AH": (AH_kv if role == "c" else AH_q)(s, R)
                elif ph == "A3": (P3_compute(s, R, False) if role == "c" else P3_loader(s, R, False, mega))
                elif ph == "B1": (B1_compute if role == "c" else B1_loader)(s, R, mega)
                elif ph == "B3": (P3_compute(s, R, True) if role == "c" else P3_loader(s, R, True, mega))
                prev = ph
            if role == "l" and phases and phases[-1] == "A1":
                s("s_barrier\ns_barrier")
            s("s_waitcnt vmcnt(0)")
            stamp(s, 14)
            stamp_flush(s, kidx)
            s("s_endpgm")
            streams[chain + role] = s
            vmax = max(vmax, R.vmax); smax = max(smax, R.smax)
        assert streams[chain + "c"].nbar == streams[chain + "l"].nbar, (chain, streams[chain + "c"].nbar, streams[chain + "l"].nbar)
    L = {k: uid("Ls" + k) for k in streams}
    a(f"s_bitcmp1_b32 s2, {3 if MIX else 2}")
    LB = uid("LchB")
    a(f"s_cbranch_scc1 {LB}")
    a(f"s_cmp_ge_u32 {sr(sW)}, 4")
    a(f"s_cbranch_scc1 {L['Al']}")
    a(f"s_branch {L['Ac']}")
    a.label(LB)
    a(f"s_cmp_ge_u32 {sr(sW)}, 4")
    a(f"s_cbranch_scc1 {L['Bl']}")
    a(f"s_branch {L['Bc']}")
    for k in ("Al", "Bl", "Ac", "Bc"):
        a.label(L[k])
        a.extend(streams[k])
    a.label(Lend)
    a("s_endpgm")
    a.lines = fix_hazards(a.lines)
    vg = (vmax + 7) // 8 * 8
    kd = f""".amdhsa_kernel {name}
  .amdhsa_next_free_vgpr {vg}
  .amdhsa_next_free_sgpr {100 if STAMPS else smax}
  .amdhsa_accum_offset {vg}
  .amdhsa_group_segment_fixed_size 0
  .amdhsa_kernarg_size 128
  .amdhsa_user_sgpr_count 2
  .amdhsa_user_sgpr_kernarg_segment_ptr 1
  .amdhsa_system_sgpr_workgroup_id_x 1
.end_amdhsa_kernel"""
    return a.text(), kd

HEADER = open("cdna_kernels/" + NAME + ".s.ref").read().split("; Override launch")[0]

MEGA = [False]
def build(mode):
    LDS = 163840
    MEGA[0] = mode != "multi"
    if mode == "multi":
        ks = [("k1_kernel", ["A1"], ["B1"]), ("k2_kernel", ["A2"], []), ("k3_kernel", ["A3"], ["B3"])]
        mega = False
    else:
        ks = [(NAME + "_kernel", ["A1", "A2", "A3"] if mode == "mega" else ["AH", "A3"], ["B1", "B3"])]
        mega = True
    out = HEADER
    for (n, _, _) in ks:
        out += f"; @launch kernel={n} grid=(256,1,1) block=(512,1,1) lds={LDS}\n"
    out += '.amdgcn_target "amdgcn-amd-amdhsa--gfx950"\n.text\n'
    kds = []
    for (n, pa, pb) in ks:
        t, kd = kernel(n, pa, pb, mega, len(kds))
        out += t; kds.append(kd)
    out += '.section .rodata,"a"\n'
    for kd in kds: out += ".p2align 6\n" + kd + "\n"
    return out

if __name__ == "__main__":
    mode = sys.argv[1] if len(sys.argv) > 1 else "multi"
    dst = sys.argv[2] if len(sys.argv) > 2 else f"cdna_kernels/{NAME}.s"
    if "--stamps" in sys.argv: STAMPS = True
    if "--mix" in sys.argv: MIX = True
    if "--nopfw" in sys.argv: PFW = False
    if "--mapa" in sys.argv: MAPA = True
    if "--qprio" in sys.argv: QPRIO = True
    for x in sys.argv:
        if x.startswith("--rot3="): ROT3 = int(x[7:])
    open(dst, "w").write(build(mode))
    print("wrote", dst)
```
